```python
import torch

def _softmax(x, axis=-1):
    return torch.softmax(x, dim=axis)
def _gelu(x):
    return torch.nn.functional.gelu(x, approximate="tanh")
def _silu(x):
    return torch.nn.functional.silu(x)
def _sigmoid(x):
    return torch.sigmoid(x)
def _layernorm(x, axis=-1, eps=1e-5):
    m = x.mean(dim=axis, keepdim=True)
    v = x.var(dim=axis, keepdim=True, unbiased=False)
    return (x - m) / torch.sqrt(v + eps)
def _scatter_add(tgt, idx, src, axis=0):
    return tgt.clone().index_add_(axis, idx, src)
def _segment_sum(src, seg, n):
    out = torch.zeros((n,) + src.shape[1:], dtype=src.dtype)
    return out.index_add_(0, seg, src)
def _pad(x, pw):
    flat = tuple(v for pair in reversed(pw) for v in pair)
    return torch.nn.functional.pad(x, flat)

kernel_name = 'parallel_sum__mha_block__glu_gated_geglu__prompt'

def setup_inputs():

    _w = (lambda a: (lambda t: t.to(torch.bfloat16) if t.is_floating_point() else t)(torch.as_tensor(a)))
    def _A_setup():
        B, S, D, H = 1, 2048, 640, 32
        return {
            "x": _w((lambda *s: torch.randn(*s, dtype=torch.bfloat16) * 0.05)(B, S, D)),
            "wqkv": _w((lambda *s: torch.randn(*s, dtype=torch.bfloat16) * 0.05)(D, 3 * D)),
            "wo": _w((lambda *s: torch.randn(*s, dtype=torch.bfloat16) * 0.05)(D, D)),
        }
    _A_in = _A_setup()

    def _B_setup():
        B, S, Dm, Df = 1, 2048, 640, 1728
        return {
            "x": _w((lambda *s: torch.randn(*s, dtype=torch.bfloat16) * 0.05)(B, S, Dm)),
            "w_gate": _w((lambda *s: torch.randn(*s, dtype=torch.bfloat16) * 0.8)(Dm, Df) * (Dm ** -0.5)),
            "w_up": _w((lambda *s: torch.randn(*s, dtype=torch.bfloat16) * 0.8)(Dm, Df) * (Dm ** -0.5)),
            "w_down": _w((lambda *s: torch.randn(*s, dtype=torch.bfloat16) * 0.8)(Df, Dm) * (Df ** -0.5)),
        }
    _B_in = _B_setup()

    return {
        "A_x": _A_in["x"],
        "A_wqkv": _A_in["wqkv"],
        "A_wo": _A_in["wo"],
        "B_x": _B_in["x"],
        "B_w_gate": _B_in["w_gate"],
        "B_w_up": _B_in["w_up"],
        "B_w_down": _B_in["w_down"],
    }

def reference(A_x, A_wqkv, A_wo, B_x, B_w_gate, B_w_up, B_w_down):
    def _A_ref(x, wqkv, wo):
        B, S, D = x.shape
        H = 32
        Dh = D // H
        qkv = (lambda x, *d: x.permute(*d))((x @ wqkv).reshape(B, S, 3, H, Dh), 2, 0, 3, 1, 4)
        q, k, v = qkv[0], qkv[1], qkv[2]
        scores = torch.einsum("bhqd,bhkd->bhqk", q, k) * (Dh ** -0.5)
        p = _softmax(scores, axis=-1)
        o = torch.einsum("bhqk,bhkd->bhqd", p, v)
        return (lambda x, *d: x.permute(*d))(o, 0, 2, 1, 3).reshape(B, S, D) @ wo

    def _B_ref(x, w_gate, w_up, w_down):
        g = torch.einsum("bsd,df->bsf", x, w_gate)
        u = torch.einsum("bsd,df->bsf", x, w_up)
        h = _gelu(g) * u
        return torch.einsum("bsf,fd->bsd", h, w_down)

    x = A_x
    xn = _layernorm(x, axis=-1)
    return x + _A_ref(xn, A_wqkv, A_wo) + _B_ref(xn, B_w_gate, B_w_up, B_w_down)
```

```python
import sys

S = 2048
D = 640
H = 32
DH = 20
DF = 1728

WS_XN = 0
WS_Q = 4 << 20
WS_K = 8 << 20
WS_V = 12 << 20
WS_H = 16 << 20
WS_O = 24 << 20


class Asm:
    def __init__(self):
        self.lines = []
        self.uid = 0

    def __call__(self, s):
        self.lines.append("    " + s)

    def label(self, l):
        self.lines.append(l + ":")

    def raw(self, s):
        self.lines.append(s)

    def newlabel(self, p="L"):
        self.uid += 1
        return f"{p}_{self.uid}"


def vr(a, n=1):
    return f"v{a}" if n == 1 else f"v[{a}:{a + n - 1}]"


def sr(a, n=1):
    return f"s{a}" if n == 1 else f"s[{a}:{a + n - 1}]"


def kernel_begin(A, name):
    A.raw(f".globl {name}")
    A.raw(".p2align 8")
    A.raw(f".type {name},@function")
    A.label(name)


def kernel_desc(name, vgpr, sgpr=96):
    acc = (vgpr + 3) // 4 * 4
    return f""".section .rodata,"a"
.p2align 6
.amdhsa_kernel {name}
  .amdhsa_next_free_vgpr {vgpr}
  .amdhsa_next_free_sgpr {sgpr}
  .amdhsa_accum_offset {acc}
  .amdhsa_group_segment_fixed_size 0
  .amdhsa_kernarg_size 80
  .amdhsa_user_sgpr_count 2
  .amdhsa_user_sgpr_kernarg_segment_ptr 1
  .amdhsa_system_sgpr_workgroup_id_x 1
.end_amdhsa_kernel
"""


def gen_ln(A):
    name = "ln_kernel"
    kernel_begin(A, name)
    A("s_cmp_ge_u32 s2, 512")
    A("s_cbranch_scc1 LN_done")
    A("s_load_dwordx2 s[4:5], s[0:1], 0")
    A("s_load_dwordx2 s[6:7], s[0:1], 72")
    A("v_lshrrev_b32 v1, 6, v0")
    A("v_and_b32 v2, 63, v0")
    A("s_lshl_b32 s3, s2, 2")
    A("v_add_u32 v1, s3, v1")
    A("s_movk_i32 s8, 1280")
    A("v_mul_lo_u32 v1, v1, s8")
    A("v_lshl_add_u32 v1, v2, 2, v1")
    A("s_waitcnt lgkmcnt(0)")
    A("s_mov_b32 s12, s4")
    A("s_mov_b32 s13, s5")
    A(f"s_mov_b32 s14, {S * D * 2}")
    A("s_mov_b32 s15, 0x00020000")
    A(f"s_add_u32 s16, s6, {WS_XN}")
    A("s_addc_u32 s17, s7, 0")
    A(f"s_mov_b32 s18, {S * D * 2}")
    A("s_mov_b32 s19, 0x00020000")
    for i in range(5):
        A(f"buffer_load_dword v{4 + i}, v1, s[12:15], 0 offen offset:{256 * i}")
    A("s_waitcnt vmcnt(0)")
    for i in range(5):
        A(f"v_lshlrev_b32 v{10 + 2 * i}, 16, v{4 + i}")
        A(f"v_and_b32 v{11 + 2 * i}, 0xffff0000, v{4 + i}")
    A("v_add_f32 v20, v10, v11")
    for i in range(2, 10):
        A(f"v_add_f32 v20, v20, v{10 + i}")

    def wave_sum(reg, tmp):
        for m in (1, 2, 4, 8, 16):
            A(f"ds_swizzle_b32 v{tmp}, v{reg} offset:{(m << 10) | 0x1f}")
            A("s_waitcnt lgkmcnt(0)")
            A(f"v_add_f32 v{reg}, v{reg}, v{tmp}")
        A("s_nop 1")
        A(f"v_readlane_b32 s20, v{reg}, 0")
        A(f"v_readlane_b32 s21, v{reg}, 32")
        A("s_nop 3")
        A(f"v_mov_b32 v{reg}, s20")
        A(f"v_add_f32 v{reg}, s21, v{reg}")

    wave_sum(20, 21)
    A("s_mov_b32 s22, 0x3acccccd")
    A("v_mul_f32 v20, s22, v20")
    A("v_sub_f32 v22, v10, v20")
    A("v_mul_f32 v23, v22, v22")
    for i in range(1, 10):
        A(f"v_sub_f32 v22, v{10 + i}, v20")
        A("v_fmac_f32 v23, v22, v22")
    wave_sum(23, 21)
    A("v_mul_f32 v23, s22, v23")
    A("v_cvt_pk_bf16_f32 v20, v20, v20")
    A("v_lshlrev_b32 v20, 16, v20")
    A("v_cvt_pk_bf16_f32 v23, v23, v23")
    A("v_lshlrev_b32 v23, 16, v23")
    A("v_add_f32 v23, 0x3727c5ac, v23")
    A("v_cvt_pk_bf16_f32 v23, v23, v23")
    A("v_lshlrev_b32 v23, 16, v23")
    A("v_sqrt_f32 v23, v23")
    A("s_nop 0")
    A("v_cvt_pk_bf16_f32 v23, v23, v23")
    A("v_lshlrev_b32 v23, 16, v23")
    A("v_rcp_f32 v23, v23")
    A("s_nop 0")
    for i in range(10):
        A(f"v_sub_f32 v{10 + i}, v{10 + i}, v20")
    for i in range(5):
        A(f"v_cvt_pk_bf16_f32 v{4 + i}, v{10 + 2 * i}, v{11 + 2 * i}")
    for i in range(5):
        A(f"v_lshlrev_b32 v{10 + 2 * i}, 16, v{4 + i}")
        A(f"v_and_b32 v{11 + 2 * i}, 0xffff0000, v{4 + i}")
    for i in range(10):
        A(f"v_mul_f32 v{10 + i}, v{10 + i}, v23")
    for i in range(5):
        A(f"v_cvt_pk_bf16_f32 v{4 + i}, v{10 + 2 * i}, v{11 + 2 * i}")
    for i in range(5):
        A(f"buffer_store_dword v{4 + i}, v1, s[16:19], 0 offen offset:{256 * i}")
    A.label("LN_done")
    A("s_endpgm")
    return kernel_desc(name, 32)


XS = 144
WSB = 320
XBUF = 128 * XS
WBUF = 64 * WSB
STAGE = XBUF + WBUF
LDS_GEMM = 2 * STAGE

V_ACC = 0
V_FX = 64
V_FW = 80
V_SX = 96
V_SW = 112
V_AX = 128
V_AW = 129
V_WX = 130
V_WW = 131
V_GX = 132
V_GW = 134
V_T = 136


def gemm_setup_lds_addrs(A):
    T = V_T
    A(f"v_and_b32 v{T}, 63, v0")
    A(f"v_lshrrev_b32 v{T+1}, 6, v0")
    A("s_nop 0")
    A(f"v_readfirstlane_b32 s30, v{T+1}")
    A("s_nop 3")
    A("s_lshr_b32 s31, s30, 1")
    A("s_and_b32 s32, s30, 1")
    A(f"v_and_b32 v{T+2}, 31, v{T}")
    A("s_lshl_b32 s33, s31, 6")
    A(f"v_add_u32 v{T+2}, s33, v{T+2}")
    A(f"v_mul_u32_u24 v{T+2}, {XS}, v{T+2}")
    A(f"v_lshrrev_b32 v{T+3}, 5, v{T}")
    A(f"v_lshl_add_u32 v{V_AX}, v{T+3}, 4, v{T+2}")
    A(f"v_lshrrev_b32 v{T+2}, 5, v{T}")
    A(f"v_lshlrev_b32 v{T+2}, 3, v{T+2}")
    A(f"v_bfe_u32 v{T+3}, v{T}, 2, 2")
    A(f"v_add_u32 v{T+2}, v{T+2}, v{T+3}")
    A(f"v_mul_u32_u24 v{T+2}, {WSB}, v{T+2}")
    A(f"v_bfe_u32 v{T+3}, v{T}, 4, 1")
    A(f"v_lshlrev_b32 v{T+3}, 5, v{T+3}")
    A(f"v_and_b32 v{T+4}, 3, v{T}")
    A(f"v_lshl_add_u32 v{T+3}, v{T+4}, 3, v{T+3}")
    A("s_lshl_b32 s33, s32, 7")
    A(f"s_add_u32 s33, s33, {XBUF}")
    A(f"v_add3_u32 v{V_AW}, v{T+2}, v{T+3}, s33")
    A(f"v_lshrrev_b32 v{T+2}, 3, v0")
    A(f"v_mul_u32_u24 v{T+2}, {XS}, v{T+2}")
    A(f"v_and_b32 v{T+3}, 7, v0")
    A(f"v_lshl_add_u32 v{V_WX}, v{T+3}, 4, v{T+2}")
    A(f"v_lshrrev_b32 v{T+2}, 4, v0")
    A(f"v_mul_u32_u24 v{T+2}, {WSB}, v{T+2}")
    A(f"v_and_b32 v{T+3}, 15, v0")
    A(f"v_lshl_add_u32 v{T+2}, v{T+3}, 4, v{T+2}")
    A(f"v_add_u32 v{V_WW}, {XBUF}, v{T+2}")


def gemm_issue_loads(A, xrow_stride, wrow_stride):
    for i in range(4):
        A(f"global_load_dwordx4 {vr(V_SX + 4 * i, 4)}, {vr(V_T + 8 + 2 * i, 2)}, off")
    for i in range(4):
        A(f"global_load_dwordx4 {vr(V_SW + 4 * i, 4)}, {vr(V_T + 16 + 2 * i, 2)}, off")


def gemm_write_lds(A, buf):
    for i in range(4):
        A(f"ds_write_b128 v{V_WX}, {vr(V_SX + 4 * i, 4)} offset:{buf * STAGE + 32 * i * XS}")
    for i in range(4):
        A(f"ds_write_b128 v{V_WW}, {vr(V_SW + 4 * i, 4)} offset:{buf * STAGE + 16 * i * WSB}")


def gemm_read_frags(A, buf, ks, st):
    for ti in range(2):
        A(f"ds_read_b128 {vr(V_FX + st * 8 + ti * 4, 4)}, v{V_AX} offset:{buf * STAGE + ti * 32 * XS + ks * 32}")
    for ci in range(2):
        for t in range(2):
            A(f"ds_read_b64_tr_b16 {vr(V_FW + st * 8 + ci * 4 + 2 * t, 2)}, v{V_AW} offset:{buf * STAGE + (ks * 16 + 4 * t) * WSB + ci * 64}")


def gemm_mfmas(A, st, swapped):
    for ti in range(2):
        for ci in range(2):
            acc = vr(V_ACC + (ti * 2 + ci) * 16, 16)
            fx = vr(V_FX + st * 8 + ti * 4, 4)
            fw = vr(V_FW + st * 8 + ci * 4, 4)
            if swapped:
                A(f"v_mfma_f32_32x32x16_bf16 {acc}, {fw}, {fx}, {acc}")
            else:
                A(f"v_mfma_f32_32x32x16_bf16 {acc}, {fx}, {fw}, {acc}")


def gemm_mainloop(A, nkt, swapped, adv_fn):
    for r in range(64):
        A(f"v_mov_b32 v{V_ACC + r}, 0")
    gemm_issue_loads(A, None, None)
    adv_fn(A, 0)
    A("s_waitcnt vmcnt(0)")
    gemm_write_lds(A, 0)
    if nkt > 1:
        gemm_issue_loads(A, None, None)
        adv_fn(A, 1)
    A("s_waitcnt lgkmcnt(0)")
    A("s_barrier")
    for kt in range(nkt):
        buf = kt & 1
        gemm_read_frags(A, buf, 0, 0)
        for ks in range(4):
            st = ks & 1
            if ks < 3:
                gemm_read_frags(A, buf, ks + 1, st ^ 1)
                A("s_waitcnt lgkmcnt(6)")
            else:
                A("s_waitcnt lgkmcnt(0)")
            gemm_mfmas(A, st, swapped)
        if kt + 1 < nkt:
            A("s_waitcnt vmcnt(0)")
            gemm_write_lds(A, buf ^ 1)
            if kt + 2 < nkt:
                gemm_issue_loads(A, None, None)
                adv_fn(A, kt + 2)
            A("s_waitcnt lgkmcnt(0)")
            A("s_barrier")
    A("s_nop 15")


def add64(A, dst, lo_src_v, base_s):
    A(f"v_mov_b32 v{dst + 1}, s{base_s + 1}")
    A(f"v_add_co_u32 v{dst}, vcc, s{base_s}, v{lo_src_v}")
    A("s_nop 1")
    A(f"v_addc_co_u32 v{dst + 1}, vcc, 0, v{dst + 1}, vcc")


def adv64(A, pair, imm_s):
    A(f"v_add_co_u32 v{pair}, vcc, s{imm_s}, v{pair}")
    A("s_nop 1")
    A(f"v_addc_co_u32 v{pair + 1}, vcc, 0, v{pair + 1}, vcc")


def gen_gemm1(A):
    name = "gemm1_kernel"
    T = V_T
    kernel_begin(A, name)
    A("s_cmp_ge_u32 s2, 672")
    A("s_cbranch_scc1 G1_done")
    A("s_load_dwordx2 s[4:5], s[0:1], 8")
    A("s_load_dwordx4 s[8:11], s[0:1], 32")
    A("s_load_dwordx2 s[6:7], s[0:1], 72")
    A("s_and_b32 s34, s2, 15")
    A("s_lshr_b32 s35, s2, 4")
    gemm_setup_lds_addrs(A)
    A("s_waitcnt lgkmcnt(0)")
    A(f"v_lshrrev_b32 v{T+2}, 3, v0")
    A("s_lshl_b32 s36, s34, 7")
    A(f"v_add_u32 v{T+2}, s36, v{T+2}")
    A(f"v_mul_u32_u24 v{T+2}, 1280, v{T+2}")
    A(f"v_and_b32 v{T+3}, 7, v0")
    A(f"v_lshl_add_u32 v{T+2}, v{T+3}, 4, v{T+2}")
    for i in range(4):
        if i:
            A(f"v_add_u32 v{T+2}, {32 * 1280}, v{T+2}")
        add64(A, T + 8 + 2 * i, T + 2, 6)
    A("s_cmp_ge_u32 s35, 15")
    A("s_cbranch_scc1 G1_glu")
    A(f"v_lshrrev_b32 v{T+2}, 4, v0")
    A(f"v_mul_u32_u24 v{T+2}, 3840, v{T+2}")
    A(f"v_and_b32 v{T+3}, 15, v0")
    A(f"v_lshl_add_u32 v{T+2}, v{T+3}, 4, v{T+2}")
    A("s_lshl_b32 s36, s35, 8")
    A(f"v_add_u32 v{T+2}, s36, v{T+2}")
    for i in range(4):
        if i:
            A(f"v_add_u32 v{T+2}, {16 * 3840}, v{T+2}")
        add64(A, T + 16 + 2 * i, T + 2, 4)
    A("s_movk_i32 s40, 128")
    A(f"s_mov_b32 s41, {64 * 3840}")

    def adv(A, kt):
        for i in range(4):
            adv64(A, T + 8 + 2 * i, 40)
        for i in range(4):
            adv64(A, T + 16 + 2 * i, 41)

    A("s_cmp_ge_u32 s35, 10")
    A("s_cbranch_scc1 G1_v")
    gemm_mainloop(A, 10, True, adv)
    A("s_cmp_ge_u32 s35, 5")
    A(f"s_mov_b32 s36, {WS_Q}")
    A(f"s_cselect_b32 s36, {WS_K}, s36")
    A("s_cselect_b32 s37, 5, 0")
    A("s_sub_u32 s37, s35, s37")
    A("s_add_u32 s44, s6, s36")
    A("s_addc_u32 s45, s7, 0")
    A(f"s_mov_b32 s46, {4 << 20}")
    A("s_mov_b32 s47, 0x00020000")
    A(f"v_and_b32 v{T+2}, 31, v{T}")
    A("s_lshl_b32 s38, s34, 7")
    A("s_lshl_b32 s39, s31, 6")
    A("s_add_u32 s38, s38, s39")
    A(f"v_add_u32 v{T+2}, s38, v{T+2}")
    A(f"v_mul_u32_u24 v{T+2}, 40, v{T+2}")
    A("s_lshl_b32 s38, s37, 7")
    A("s_lshl_b32 s39, s32, 6")
    A("s_add_u32 s38, s38, s39")
    A(f"v_lshrrev_b32 v{T+3}, 5, v{T}")
    A(f"v_lshlrev_b32 v{T+3}, 2, v{T+3}")
    A(f"v_add_u32 v{T+3}, s38, v{T+3}")
    A("s_movk_i32 s38, 3277")
    A(f"s_mov_b32 s39, {S * 40 - 40}")
    for ci in range(2):
        for q4 in range(4):
            A(f"v_add_u32 v{T+4}, {ci * 32 + 8 * q4}, v{T+3}")
            A(f"v_mul_lo_u32 v{T+5}, v{T+4}, s38")
            A(f"v_lshrrev_b32 v{T+5}, 16, v{T+5}")
            A(f"v_mul_lo_u32 v{T+5}, v{T+5}, s39")
            A(f"v_lshl_add_u32 v{T+5}, v{T+4}, 1, v{T+5}")
            A(f"v_add_u32 v{T+5}, v{T+5}, v{T+2}")
            for ti in range(2):
                a = V_ACC + (ti * 2 + ci) * 16 + 4 * q4
                A(f"v_cvt_pk_bf16_f32 v{T+6}, v{a}, v{a+1}")
                A(f"v_cvt_pk_bf16_f32 v{T+7}, v{a+2}, v{a+3}")
                A(f"buffer_store_dwordx2 {vr(T+6, 2)}, v{T+5}, s[44:47], 0 offen offset:{ti * 32 * 40}")
    A("s_branch G1_done")
    A.label("G1_v")
    gemm_mainloop(A, 10, False, adv)
    A(f"s_add_u32 s44, s6, {WS_V}")
    A("s_addc_u32 s45, s7, 0")
    A(f"s_mov_b32 s46, {4 << 20}")
    A("s_mov_b32 s47, 0x00020000")
    A("s_sub_u32 s37, s35, 10")
    A("s_lshl_b32 s38, s37, 7")
    A("s_lshl_b32 s39, s32, 6")
    A("s_add_u32 s38, s38, s39")
    A(f"v_and_b32 v{T+3}, 31, v{T}")
    A(f"v_add_u32 v{T+3}, s38, v{T+3}")
    A("s_lshl_b32 s38, s34, 2")
    A("s_lshl_b32 s39, s31, 1")
    A("s_add_u32 s38, s38, s39")
    A("s_mul_i32 s36, s38, 1280")
    A(f"v_lshrrev_b32 v{T+2}, 5, v{T}")
    A(f"v_lshlrev_b32 v{T+2}, 4, v{T+2}")
    A(f"v_add_u32 v{T+2}, s36, v{T+2}")
    A("s_movk_i32 s38, 3277")
    A(f"s_mov_b32 s39, {S * 40 - 20 * 64}")
    for ci in range(2):
        A(f"v_add_u32 v{T+4}, {ci * 32}, v{T+3}")
        A(f"v_mul_lo_u32 v{T+5}, v{T+4}, s38")
        A(f"v_lshrrev_b32 v{T+5}, 16, v{T+5}")
        A(f"v_mul_lo_u32 v{T+5}, v{T+5}, s39")
        A(f"v_lshl_add_u32 v{T+5}, v{T+4}, 6, v{T+5}")
        A(f"v_add_u32 v{T+5}, v{T+5}, v{T+2}")
        for ti in range(2):
            a = V_ACC + (ti * 2 + ci) * 16
            for s in range(2):
                for j in range(4):
                    A(f"v_cvt_pk_bf16_f32 v{T+8+j}, v{a + 8 * s + 2 * j}, v{a + 8 * s + 2 * j + 1}")
                A(f"buffer_store_dwordx4 {vr(T+8, 4)}, v{T+5}, s[44:47], 0 offen offset:{ti * 1280 + s * 32}")
                A("s_nop 1")
    A("s_branch G1_done")
    A.label("G1_glu")
    A("s_sub_u32 s37, s35, 15")
    A(f"v_lshrrev_b32 v{T+2}, 4, v0")
    A(f"v_mul_u32_u24 v{T+2}, {DF * 2}, v{T+2}")
    A(f"v_bfe_u32 v{T+3}, v0, 3, 1")
    A(f"v_lshlrev_b32 v{T+3}, 6, v{T+3}")
    A(f"v_and_b32 v{T+4}, 3, v0")
    A(f"v_lshl_add_u32 v{T+3}, v{T+4}, 4, v{T+3}")
    A(f"v_add_u32 v{T+2}, v{T+2}, v{T+3}")
    A("s_lshl_b32 s36, s37, 7")
    A(f"v_add_u32 v{T+2}, s36, v{T+2}")
    A(f"v_bfe_u32 v{T+3}, v0, 2, 1")
    A(f"v_cmp_eq_u32 vcc, 1, v{T+3}")
    A(f"v_mov_b32 v{T+4}, s8")
    A(f"v_mov_b32 v{T+5}, s9")
    A(f"v_mov_b32 v{T+6}, s10")
    A(f"v_mov_b32 v{T+7}, s11")
    A(f"v_cndmask_b32 v{T+4}, v{T+4}, v{T+6}, vcc")
    A(f"v_cndmask_b32 v{T+5}, v{T+5}, v{T+7}, vcc")
    for i in range(4):
        if i:
            A(f"v_add_u32 v{T+2}, {16 * DF * 2}, v{T+2}")
        A(f"v_add_co_u32 v{T+16+2*i}, vcc, v{T+4}, v{T+2}")
        A("s_nop 1")
        A(f"v_addc_co_u32 v{T+17+2*i}, vcc, 0, v{T+5}, vcc")
    A("s_movk_i32 s40, 128")
    A(f"s_mov_b32 s41, {64 * DF * 2}")
    gemm_mainloop(A, 10, True, adv)
    A(f"s_add_u32 s44, s6, {WS_H}")
    A("s_addc_u32 s45, s7, 0")
    A(f"s_mov_b32 s46, {S * DF * 2}")
    A("s_mov_b32 s47, 0x00020000")
    A(f"v_and_b32 v{T+2}, 31, v{T}")
    A("s_lshl_b32 s38, s34, 7")
    A("s_lshl_b32 s39, s31, 6")
    A("s_add_u32 s38, s38, s39")
    A(f"v_add_u32 v{T+2}, s38, v{T+2}")
    A(f"v_mul_u32_u24 v{T+2}, {DF * 2}, v{T+2}")
    A("s_lshl_b32 s38, s37, 7")
    A("s_lshl_b32 s39, s32, 6")
    A("s_add_u32 s38, s38, s39")
    A(f"v_lshrrev_b32 v{T+3}, 5, v{T}")
    A(f"v_lshlrev_b32 v{T+3}, 3, v{T+3}")
    A(f"v_add3_u32 v{T+2}, v{T+2}, v{T+3}, s38")
    A(f"s_mov_b32 s42, {32 * DF * 2}")
    A("s_mov_b32 s38, 0x3d372713")
    A("s_mov_b32 s39, 0xc0135761")
    for ti in range(2):
        g = V_ACC + (ti * 2 + 0) * 16
        u = V_ACC + (ti * 2 + 1) * 16
        for q4 in range(4):
            for j in range(4):
                r = 4 * q4 + j
                t0 = T + 8 + j
                A(f"v_mul_f32 v{t0}, v{g + r}, v{g + r}")
                A(f"v_fma_f32 v{t0}, v{t0}, s38, 1.0")
                A(f"v_mul_f32 v{t0}, v{t0}, v{g + r}")
                A(f"v_mul_f32 v{t0}, s39, v{t0}")
                A(f"v_exp_f32 v{t0}, v{t0}")
                A(f"v_mul_f32 v{g + r}, v{g + r}, v{u + r}")
                A(f"v_add_f32 v{t0}, 1.0, v{t0}")
                A(f"v_rcp_f32 v{t0}, v{t0}")
                A("s_nop 0")
                A(f"v_mul_f32 v{t0}, v{g + r}, v{t0}")
            A(f"v_cvt_pk_bf16_f32 v{T+12}, v{T+8}, v{T+9}")
            A(f"v_cvt_pk_bf16_f32 v{T+13}, v{T+10}, v{T+11}")
            A(f"buffer_store_dwordx2 {vr(T+12, 2)}, v{T+2}, s[44:47], {'s42' if ti else '0'} offen offset:{q4 * 16}")
    A.label("G1_done")
    A("s_endpgm")
    return kernel_desc(name, 160)


def gen_gemm2(A):
    name = "gemm2_kernel"
    T = V_T
    kernel_begin(A, name)
    A("s_cmp_ge_u32 s2, 80")
    A("s_cbranch_scc1 G2_done")
    A("s_load_dwordx2 s[4:5], s[0:1], 16")
    A("s_load_dwordx2 s[8:9], s[0:1], 48")
    A("s_load_dwordx2 s[10:11], s[0:1], 0")
    A("s_load_dwordx2 s[12:13], s[0:1], 56")
    A("s_load_dwordx2 s[6:7], s[0:1], 72")
    A("s_and_b32 s34, s2, 15")
    A("s_lshr_b32 s35, s2, 4")
    A("v_mov_b32 v132, v0")
    gemm_setup_lds_addrs(A)
    A("s_waitcnt lgkmcnt(0)")
    A(f"s_add_u32 s14, s6, {WS_O}")
    A("s_addc_u32 s15, s7, 0")
    A(f"s_add_u32 s16, s6, {WS_H}")
    A("s_addc_u32 s17, s7, 0")

    def setx(stride, base_s):
        A(f"v_lshrrev_b32 v{T+2}, 3, v132")
        A("s_lshl_b32 s36, s34, 7")
        A(f"v_add_u32 v{T+2}, s36, v{T+2}")
        A(f"v_mul_u32_u24 v{T+2}, {stride}, v{T+2}")
        A(f"v_and_b32 v{T+3}, 7, v132")
        A(f"v_lshl_add_u32 v{T+2}, v{T+3}, 4, v{T+2}")
        for i in range(4):
            if i:
                A(f"v_add_u32 v{T+2}, {32 * stride}, v{T+2}")
            add64(A, T + 8 + 2 * i, T + 2, base_s)

    def setw(base_s):
        A(f"v_lshrrev_b32 v{T+2}, 4, v132")
        A(f"v_mul_u32_u24 v{T+2}, 1280, v{T+2}")
        A(f"v_and_b32 v{T+3}, 15, v132")
        A(f"v_lshl_add_u32 v{T+2}, v{T+3}, 4, v{T+2}")
        A("s_lshl_b32 s36, s35, 8")
        A(f"v_add_u32 v{T+2}, s36, v{T+2}")
        for i in range(4):
            if i:
                A(f"v_add_u32 v{T+2}, {16 * 1280}, v{T+2}")
            add64(A, T + 16 + 2 * i, T + 2, base_s)

    setx(1280, 14)
    setw(4)
    A("s_movk_i32 s40, 128")
    A(f"s_mov_b32 s41, {64 * 1280}")

    def adv(A, kt):
        if kt == 9:
            setx(DF * 2, 16)
            setw(8)
        else:
            for i in range(4):
                adv64(A, T + 8 + 2 * i, 40)
            for i in range(4):
                adv64(A, T + 16 + 2 * i, 41)

    gemm_mainloop(A, 10 + 27, True, adv)
    A("s_mov_b32 s44, s10")
    A("s_mov_b32 s45, s11")
    A(f"s_mov_b32 s46, {S * D * 2}")
    A("s_mov_b32 s47, 0x00020000")
    A("s_mov_b32 s48, s12")
    A("s_mov_b32 s49, s13")
    A(f"s_mov_b32 s50, {S * D * 2}")
    A("s_mov_b32 s51, 0x00020000")
    A(f"v_and_b32 v{T+2}, 31, v{T}")
    A("s_lshl_b32 s38, s34, 7")
    A("s_lshl_b32 s39, s31, 6")
    A("s_add_u32 s38, s38, s39")
    A(f"v_add_u32 v{T+2}, s38, v{T+2}")
    A(f"v_mul_u32_u24 v{T+2}, 1280, v{T+2}")
    A("s_lshl_b32 s38, s35, 8")
    A("s_lshl_b32 s39, s32, 7")
    A("s_add_u32 s38, s38, s39")
    A(f"v_lshrrev_b32 v{T+3}, 5, v{T}")
    A(f"v_lshlrev_b32 v{T+3}, 3, v{T+3}")
    A(f"v_add3_u32 v{T+2}, v{T+2}, v{T+3}, s38")
    A(f"s_mov_b32 s42, {32 * 1280}")
    for ti in range(2):
        so = "s42" if ti else "0"
        for ci in range(2):
            for q4 in range(4):
                off = ci * 64 + q4 * 16
                A(f"buffer_load_dwordx2 {vr(V_SX + 2 * (ci * 4 + q4), 2)}, v{T+2}, s[44:47], {so} offen offset:{off}")
        for ci in range(2):
            for q4 in range(4):
                off = ci * 64 + q4 * 16
                a = V_ACC + (ti * 2 + ci) * 16 + 4 * q4
                xr = V_SX + 2 * (ci * 4 + q4)
                A(f"s_waitcnt vmcnt({7 - (ci * 4 + q4)})")
                A(f"v_lshlrev_b32 v{T+4}, 16, v{xr}")
                A(f"v_and_b32 v{T+5}, 0xffff0000, v{xr}")
                A(f"v_lshlrev_b32 v{T+6}, 16, v{xr+1}")
                A(f"v_and_b32 v{T+7}, 0xffff0000, v{xr+1}")
                for j in range(4):
                    A(f"v_add_f32 v{T+4+j}, v{T+4+j}, v{a+j}")
                A(f"v_cvt_pk_bf16_f32 v{T+8}, v{T+4}, v{T+5}")
                A(f"v_cvt_pk_bf16_f32 v{T+9}, v{T+6}, v{T+7}")
                A(f"buffer_store_dwordx2 {vr(T+8, 2)}, v{T+2}, s[48:51], {so} offen offset:{off}")
        A("s_waitcnt vmcnt(0)")
    A.label("G2_done")
    A("s_endpgm")
    return kernel_desc(name, 160)


CH = 256
KBUF = CH * 64
VBUF = (CH // 32) * 2048
ASTAGE = KBUF + VBUF
LDS_ATT = 2 * ASTAGE


def gen_attn(A):
    name = "attn_kernel"
    kernel_begin(A, name)
    O = 0
    SC = 16
    QF = 32
    KF = 40
    VF = 48
    PF = 56
    ST = 64
    LW = 74
    GO = 79
    AK0, AK1 = 80, 81
    M = 82
    T = 84
    A("s_cmp_ge_u32 s2, 256")
    A("s_cbranch_scc1 AT_done")
    A("s_load_dwordx2 s[6:7], s[0:1], 72")
    A("s_lshr_b32 s34, s2, 3")
    A("s_and_b32 s35, s2, 7")
    A(f"v_and_b32 v{T}, 63, v0")
    A(f"v_lshrrev_b32 v{T+1}, 6, v0")
    A("s_nop 0")
    A(f"v_readfirstlane_b32 s30, v{T+1}")
    A("s_waitcnt lgkmcnt(0)")
    A("s_mul_i32 s36, s34, 81920")
    for (sd, off) in ((8, WS_Q), (12, WS_K), (16, WS_V)):
        A(f"s_add_u32 s{sd}, s6, {off}")
        A(f"s_addc_u32 s{sd+1}, s7, 0")
        A(f"s_add_u32 s{sd}, s{sd}, s36")
        A(f"s_addc_u32 s{sd+1}, s{sd+1}, 0")
        A(f"s_mov_b32 s{sd+2}, 81920")
        A(f"s_mov_b32 s{sd+3}, 0x00020000")
    A(f"s_add_u32 s20, s6, {WS_O}")
    A("s_addc_u32 s21, s7, 0")
    A(f"s_mov_b32 s22, {S * D * 2}")
    A("s_mov_b32 s23, 0x00020000")
    A(f"v_mov_b32 v{T+2}, 0")
    A(f"v_mov_b32 v{T+3}, 0")
    A(f"v_mov_b32 v{T+4}, 0")
    A(f"v_mov_b32 v{T+5}, 0")
    A(f"v_lshlrev_b32 v{T+6}, 4, v0")
    for i in range(8):
        A(f"ds_write_b128 v{T+6}, {vr(T+2, 4)} offset:{i * 8192}")
    A("s_waitcnt lgkmcnt(0)")
    A("s_barrier")
    A("s_cmp_lg_u32 s30, 0")
    A("s_cbranch_scc1 AT_noones")
    A(f"v_lshrrev_b32 v{T+6}, 2, v{T}")
    A(f"v_lshrrev_b32 v{T+7}, 3, v{T+6}")
    A(f"v_mul_u32_u24 v{T+7}, {ASTAGE}, v{T+7}")
    A(f"v_and_b32 v{T+6}, 7, v{T+6}")
    A(f"v_lshl_add_u32 v{T+7}, v{T+6}, 11, v{T+7}")
    A(f"v_and_b32 v{T+6}, 3, v{T}")
    A(f"v_lshl_add_u32 v{T+7}, v{T+6}, 4, v{T+7}")
    A(f"v_mov_b32 v{T+2}, 0x3f803f80")
    A(f"v_mov_b32 v{T+3}, 0x3f803f80")
    A(f"v_mov_b32 v{T+4}, 0x3f803f80")
    A(f"v_mov_b32 v{T+5}, 0x3f803f80")
    A(f"ds_write_b128 v{T+7}, {vr(T+2, 4)} offset:{KBUF + 20 * 64}")
    A.label("AT_noones")
    A(f"v_and_b32 v{T+2}, 255, v0")
    A(f"v_lshlrev_b32 v{GO}, 3, v{T+2}")
    A("s_cmp_ge_u32 s30, 4")
    A("s_cbranch_scc1 AT_vaddr")
    A("s_movk_i32 s38, 13108")
    for i in range(5):
        A(f"v_add_u32 v{T+3}, {256 * i}, v{T+2}")
        A(f"v_mul_lo_u32 v{T+4}, v{T+3}, s38")
        A(f"v_lshrrev_b32 v{T+4}, 16, v{T+4}")
        A(f"v_mul_u32_u24 v{T+5}, 5, v{T+4}")
        A(f"v_sub_u32 v{T+5}, v{T+3}, v{T+5}")
        A(f"v_lshrrev_b32 v{T+6}, 1, v{T+5}")
        A(f"v_bfe_u32 v{T+7}, v{T+4}, 2, 2")
        A(f"v_xor_b32 v{T+6}, v{T+6}, v{T+7}")
        A(f"v_lshlrev_b32 v{T+6}, 4, v{T+6}")
        A(f"v_and_b32 v{T+5}, 1, v{T+5}")
        A(f"v_lshl_add_u32 v{T+6}, v{T+5}, 3, v{T+6}")
        A(f"v_lshl_add_u32 v{LW+i}, v{T+4}, 6, v{T+6}")
    A("s_branch AT_addr_done")
    A.label("AT_vaddr")
    A("s_movk_i32 s38, 6554")
    for i in range(5):
        A(f"v_add_u32 v{T+3}, {256 * i}, v{T+2}")
        A(f"v_mul_lo_u32 v{T+4}, v{T+3}, s38")
        A(f"v_lshrrev_b32 v{T+4}, 20, v{T+4}")
        A(f"v_mul_u32_u24 v{T+5}, 160, v{T+4}")
        A(f"v_sub_u32 v{T+5}, v{T+3}, v{T+5}")
        A(f"v_lshrrev_b32 v{T+8}, 3, v{T+5}")
        A(f"v_bfe_u32 v{T+6}, v{T+5}, 1, 2")
        A(f"v_bfe_u32 v{T+7}, v{T+8}, 2, 2")
        A(f"v_xor_b32 v{T+6}, v{T+6}, v{T+7}")
        A(f"v_lshlrev_b32 v{T+6}, 4, v{T+6}")
        A(f"v_and_b32 v{T+5}, 1, v{T+5}")
        A(f"v_lshl_add_u32 v{T+6}, v{T+5}, 3, v{T+6}")
        A(f"v_lshl_add_u32 v{T+6}, v{T+8}, 6, v{T+6}")
        A(f"v_lshl_add_u32 v{T+6}, v{T+4}, 11, v{T+6}")
        A(f"v_add_u32 v{LW+i}, {KBUF}, v{T+6}")
    A.label("AT_addr_done")
    A("s_cmp_ge_u32 s30, 4")
    A("s_cselect_b32 s24, s16, s12")
    A("s_cselect_b32 s25, s17, s13")
    A("s_mov_b32 s26, 81920")
    A("s_mov_b32 s27, 0x00020000")
    A("s_movk_i32 s28, 4096")
    A("s_movk_i32 s29, 8192")
    A(f"v_and_b32 v{T+2}, 31, v{T}")
    A(f"v_lshrrev_b32 v{T+3}, 5, v{T}")
    A(f"v_bfe_u32 v{T+4}, v{T}, 2, 2")
    A(f"v_xor_b32 v{T+5}, v{T+3}, v{T+4}")
    A(f"v_lshlrev_b32 v{T+5}, 4, v{T+5}")
    A(f"v_lshl_add_u32 v{AK0}, v{T+2}, 6, v{T+5}")
    A(f"v_xor_b32 v{AK1}, 32, v{AK0}")
    A("s_lshl_b32 s36, s35, 8")
    A("s_lshl_b32 s37, s30, 5")
    A("s_add_u32 s36, s36, s37")
    A(f"v_add_u32 v{T+2}, s36, v{T+2}")
    A(f"v_mul_u32_u24 v{T+5}, 40, v{T+2}")
    A(f"v_lshl_add_u32 v{T+6}, v{T+3}, 4, v{T+5}")
    A(f"buffer_load_dwordx4 {vr(QF, 4)}, v{T+6}, s[8:11], 0 offen")
    A(f"buffer_load_dwordx2 {vr(QF+4, 2)}, v{T+5}, s[8:11], 0 offen offset:32")
    for i in range(5):
        A(f"buffer_load_dwordx2 {vr(ST+2*i, 2)}, v{GO}, s[24:27], {['0','0','s28','s28','s29'][i]} offen offset:{[0,2048,0,2048,0][i]}")
    for r in range(16):
        A(f"v_mov_b32 v{O+r}, 0")
    A(f"v_mov_b32 v{M}, 0xff800000")
    A("s_waitcnt vmcnt(5)")
    A(f"v_cmp_gt_u32 vcc, 32, v{T}")
    A("s_nop 1")
    A(f"v_cndmask_b32 v{QF+4}, 0, v{QF+4}, vcc")
    A(f"v_cndmask_b32 v{QF+5}, 0, v{QF+5}, vcc")
    A(f"v_mov_b32 v{QF+6}, 0")
    A(f"v_mov_b32 v{QF+7}, 0")
    A("s_waitcnt vmcnt(0)")
    for i in range(5):
        A(f"ds_write_b64 v{LW+i}, {vr(ST+2*i, 2)}")
    A("s_mov_b32 s40, 0")
    A("s_mov_b32 s41, 0x3e224f3b")
    import struct
    c = DH ** -0.5 * 1.4426950408889634
    cbits = struct.unpack("<I", struct.pack("<f", c))[0]
    A(f"s_mov_b32 s41, 0x{cbits:08x}")
    A("s_waitcnt lgkmcnt(0)")
    A("s_barrier")
    A.label("AT_loop")
    A("s_add_u32 s42, s40, 1")
    A("s_cmp_lt_u32 s42, 8")
    A("s_cbranch_scc0 AT_noload")
    A(f"v_add_u32 v{GO}, {CH * 40}, v{GO}")
    for i in range(5):
        A(f"buffer_load_dwordx2 {vr(ST+2*i, 2)}, v{GO}, s[24:27], {['0','0','s28','s28','s29'][i]} offen offset:{[0,2048,0,2048,0][i]}")
    A.label("AT_noload")
    A("s_and_b32 s43, s40, 1")
    A(f"s_mul_i32 s43, s43, {ASTAGE}")
    A(f"v_add_u32 v{T+8}, s43, v{AK0}")
    A(f"v_add_u32 v{T+9}, s43, v{AK1}")
    for tl in range(CH // 32):
        lab = A.newlabel("AT_nors")
        A(f"ds_read_b128 {vr(KF, 4)}, v{T+8} offset:{tl * 2048}")
        A(f"ds_read_b128 {vr(KF+4, 4)}, v{T+9} offset:{tl * 2048}")
        A(f"ds_read_b128 {vr(VF, 4)}, v{T+8} offset:{KBUF + tl * 2048}")
        A(f"ds_read_b128 {vr(VF+4, 4)}, v{T+9} offset:{KBUF + tl * 2048}")
        A("s_waitcnt lgkmcnt(2)")
        A(f"v_mfma_f32_32x32x16_bf16 {vr(SC, 16)}, {vr(KF, 4)}, {vr(QF, 4)}, 0")
        A(f"v_mfma_f32_32x32x16_bf16 {vr(SC, 16)}, {vr(KF+4, 4)}, {vr(QF+4, 4)}, {vr(SC, 16)}")
        A("s_nop 15")
        A("s_nop 3")
        A(f"v_max3_f32 v{T+2}, v{SC}, v{SC+1}, v{SC+2}")
        for r in range(3, 15, 2):
            A(f"v_max3_f32 v{T+2}, v{T+2}, v{SC+r}, v{SC+r+1}")
        A(f"v_max_f32 v{T+2}, v{T+2}, v{SC+15}")
        A(f"v_mov_b32 v{T+3}, v{T+2}")
        A("s_nop 1")
        A(f"v_permlane32_swap_b32 v{T+2}, v{T+3}")
        A("s_nop 1")
        A(f"v_max3_f32 v{T+2}, v{T+2}, v{T+3}, v{M}")
        A(f"v_cmp_gt_f32 vcc, v{T+2}, v{M}")
        A(f"s_cbranch_vccz {lab}")
        A(f"v_sub_f32 v{T+3}, v{M}, v{T+2}")
        A(f"v_mul_f32 v{T+3}, s41, v{T+3}")
        A(f"v_exp_f32 v{T+3}, v{T+3}")
        A(f"v_mov_b32 v{M}, v{T+2}")
        A("s_nop 0")
        for r in range(12):
            A(f"v_mul_f32 v{O+r}, v{O+r}, v{T+3}")
        A.label(lab)
        A(f"v_mul_f32 v{T+3}, s41, v{M}")
        for r in range(16):
            A(f"v_fma_f32 v{SC+r}, v{SC+r}, s41, -v{T+3}")
        for r in range(16):
            A(f"v_exp_f32 v{SC+r}, v{SC+r}")
        A("s_nop 0")
        for j in range(8):
            A(f"v_cvt_pk_bf16_f32 v{PF+j}, v{SC+2*j}, v{SC+2*j+1}")
        A("s_waitcnt lgkmcnt(0)")
        A("s_nop 0")
        A(f"v_mfma_f32_32x32x16_bf16 {vr(O, 16)}, {vr(VF, 4)}, {vr(PF, 4)}, {vr(O, 16)}")
        A(f"v_mfma_f32_32x32x16_bf16 {vr(O, 16)}, {vr(VF+4, 4)}, {vr(PF+4, 4)}, {vr(O, 16)}")
        A("s_nop 15")
        A("s_nop 3")
    A("s_add_u32 s40, s40, 1")
    A("s_cmp_lt_u32 s40, 8")
    A("s_cbranch_scc0 AT_fin")
    A("s_and_b32 s43, s40, 1")
    A(f"s_mul_i32 s43, s43, {ASTAGE}")
    A("s_waitcnt vmcnt(0)")
    for i in range(5):
        A(f"v_add_u32 v{T+2}, s43, v{LW+i}")
        A(f"ds_write_b64 v{T+2}, {vr(ST+2*i, 2)}")
    A("s_waitcnt lgkmcnt(0)")
    A("s_barrier")
    A("s_branch AT_loop")
    A.label("AT_fin")
    A(f"v_mov_b32 v{T+2}, v{O+8}")
    A(f"v_mov_b32 v{T+3}, v{O+8}")
    A("s_nop 1")
    A(f"v_permlane32_swap_b32 v{T+2}, v{T+3}")
    A("s_nop 1")
    A(f"v_cmp_gt_u32 vcc, 32, v{T}")
    A("s_nop 1")
    A(f"v_cndmask_b32 v{T+2}, v{O+8}, v{T+3}, vcc")
    A(f"v_rcp_f32 v{T+2}, v{T+2}")
    A("s_nop 0")
    for r in range(12):
        A(f"v_mul_f32 v{O+r}, v{O+r}, v{T+2}")
    A(f"v_and_b32 v{T+3}, 31, v{T}")
    A(f"v_add_u32 v{T+3}, s36, v{T+3}")
    A(f"v_mul_u32_u24 v{T+3}, 1280, v{T+3}")
    A("s_mul_i32 s37, s34, 40")
    A(f"v_lshrrev_b32 v{T+4}, 5, v{T}")
    A(f"v_lshlrev_b32 v{T+4}, 3, v{T+4}")
    A(f"v_add3_u32 v{T+3}, v{T+3}, v{T+4}, s37")
    for g in range(3):
        A(f"v_cvt_pk_bf16_f32 v{T+4}, v{O+4*g}, v{O+4*g+1}")
        A(f"v_cvt_pk_bf16_f32 v{T+5}, v{O+4*g+2}, v{O+4*g+3}")
        if g == 2:
            A("s_and_saveexec_b64 s[44:45], vcc")
        A(f"buffer_store_dwordx2 {vr(T+4, 2)}, v{T+3}, s[20:23], 0 offen offset:{16 * g}")
    A.label("AT_done")
    A("s_endpgm")
    return kernel_desc(name, 104)


def main():
    A = Asm()
    hdr = open("parallel_sum__mha_block__glu_gated_geglu__prompt.s.ref").read().split("; Override")[0]
    out = hdr
    out += "; @launch kernel=ln_kernel grid=(512,1,1) block=(256,1,1) lds=0\n"
    out += f"; @launch kernel=gemm1_kernel grid=(672,1,1) block=(256,1,1) lds={LDS_GEMM}\n"
    out += f"; @launch kernel=attn_kernel grid=(256,1,1) block=(512,1,1) lds={LDS_ATT}\n"
    out += f"; @launch kernel=gemm2_kernel grid=(80,1,1) block=(256,1,1) lds={LDS_GEMM}\n"
    out += '.amdgcn_target "amdgcn-amd-amdhsa--gfx950"\n.text\n'
    descs = []
    descs.append(gen_ln(A))
    descs.append(gen_gemm1(A))
    descs.append(gen_attn(A))
    descs.append(gen_gemm2(A))
    out += "\n".join(A.lines) + "\n"
    out += "".join(descs)
    dst = sys.argv[1] if len(sys.argv) > 1 else "parallel_sum__mha_block__glu_gated_geglu__prompt.s"
    open(dst, "w").write(out)
    for c4 in range(640):
        assert (c4 * 3277) >> 16 == c4 // 20
    for p in range(1280):
        assert (p * 13108) >> 16 == p // 5
        assert (p * 6554) >> 20 == p // 160


if __name__ == "__main__":
    main()
```

```python
import os
import struct
import sys

FL = set(os.environ.get('FLAGS', '').split(','))

from gen import Asm, vr, sr, kernel_begin, kernel_desc, gen_ln

S = 2048
D = 640
H = 32
DH = 20
DF = 1728

WS_XN = 0
WS_Q = 4 << 20
WS_K = 8 << 20
WS_V = 12 << 20
WS_H = 16 << 20
WS_O = 24 << 20
HEADB = 2048 * 64

CSCALE = DH ** -0.5 * 1.4426950408889634


def fbits(x):
    return struct.unpack("<I", struct.pack("<f", x))[0]


NST = 4


STAMPN = [0]


def stamp(A):
    n = STAMPN[0]
    if n < 15:
        A(f"s_memtime s[{60 + 2 * n}:{61 + 2 * n}]")
    STAMPN[0] += 1


class Gemm:
    def __init__(self, TM, TN, WM=2, WN=2):
        self.TM, self.TN, self.WM, self.WN = TM, TN, WM, WN
        self.BM, self.BN = 32 * TM * WM, 32 * TN * WN
        self.RS = self.BN * 2
        self.XB = self.BM * 64
        self.WB = self.BN * 64
        self.STAGE = self.XB + self.WB
        self.LDS = NST * self.STAGE
        self.nx = self.BM // 16 // 4
        self.nwi = self.BN // 16
        self.nw = (self.nwi + 3) // 4
        self.mode = {64: 'x1', 128: 'x2', 160: 'lin'}[self.BN]
        self.naw = 2 if self.mode == 'x2' else 1
        self.ACC = 0
        n = TM * TN * 16
        self.FX = n
        self.FW = self.FX + 8 * TM
        self.AX = self.FW + 8 * TN
        self.AW = self.AX + 2
        self.GX = self.AW + 2
        self.GW = self.GX + 2 * self.nx
        self.TID = self.GW + 2 * self.nw
        self.T = self.TID + 1
        if self.T & 1:
            self.T += 1
        self.NV = self.T + 24

    def acc(self, ti, ci):
        return self.ACC + (ti * self.TN + ci) * 16

    def setup(self, A):
        T = self.T
        A(f"v_mov_b32 v{self.TID}, v0")
        A(f"v_and_b32 v{T}, 63, v0")
        A(f"v_lshrrev_b32 v{T+1}, 6, v0")
        A("s_nop 0")
        A(f"v_readfirstlane_b32 s30, v{T+1}")
        A("s_nop 3")
        if self.WN == 2:
            A("s_lshr_b32 s31, s30, 1")
            A("s_and_b32 s32, s30, 1")
        else:
            A("s_mov_b32 s31, s30")
            A("s_mov_b32 s32, 0")
        A(f"v_and_b32 v{T+2}, 31, v{T}")
        A(f"s_mul_i32 s33, s31, {32 * self.TM}")
        A(f"v_add_u32 v{T+2}, s33, v{T+2}")
        A(f"v_lshrrev_b32 v{T+3}, 5, v{T}")
        A(f"v_bfe_u32 v{T+4}, v{T}, 2, 2")
        A(f"v_xor_b32 v{T+3}, v{T+3}, v{T+4}")
        A(f"v_lshlrev_b32 v{T+3}, 4, v{T+3}")
        A(f"v_lshl_add_u32 v{self.AX}, v{T+2}, 6, v{T+3}")
        A(f"v_xor_b32 v{self.AX+1}, 32, v{self.AX}")
        RS = self.RS
        A(f"v_lshrrev_b32 v{T+2}, 5, v{T}")
        A(f"v_lshlrev_b32 v{T+2}, 3, v{T+2}")
        A(f"v_bfe_u32 v{T+3}, v{T}, 2, 2")
        A(f"v_add_u32 v{T+2}, v{T+2}, v{T+3}")
        A(f"v_mul_u32_u24 v{T+2}, {RS}, v{T+2}")
        if self.mode == 'x2':
            A("s_lshl_b32 s33, s32, 1")
            A(f"v_xor_b32 v{T+3}, s33, v{T+3}")
            A(f"v_lshl_add_u32 v{T+2}, v{T+3}, 6, v{T+2}")
        elif self.mode == 'x1':
            A(f"v_lshrrev_b32 v{T+3}, 1, v{T+3}")
            A(f"v_xor_b32 v{T+3}, s32, v{T+3}")
            A(f"v_lshl_add_u32 v{T+2}, v{T+3}, 6, v{T+2}")
        A(f"v_bfe_u32 v{T+3}, v{T}, 4, 1")
        A(f"v_lshl_add_u32 v{T+2}, v{T+3}, 5, v{T+2}")
        A(f"v_and_b32 v{T+3}, 3, v{T}")
        A(f"v_lshl_add_u32 v{T+2}, v{T+3}, 3, v{T+2}")
        A(f"v_add_u32 v{self.AW}, {self.XB}, v{T+2}")
        if self.mode == 'x2':
            A(f"v_xor_b32 v{self.AW+1}, 64, v{self.AW}")
        A(f"s_mul_i32 s28, s30, {self.nx * 1024}")
        for j in range(self.nw):
            if self.mode == 'lin':
                A(f"s_add_u32 s{24+j}, s30, {4 * j}")
                A(f"s_min_u32 s{24+j}, s{24+j}, {self.nwi - 1}")
            else:
                A(f"s_mul_i32 s{24+j}, s30, {self.nw}")
                A(f"s_add_u32 s{24+j}, s{24+j}, {j}")

    def xaddr(self, A, base_s, xstride, tok0_s):
        T = self.T
        A(f"v_lshrrev_b32 v{T+2}, 2, v{T}")
        A(f"s_mul_i32 s33, s30, {16 * self.nx}")
        A(f"s_add_u32 s33, s33, s{tok0_s}")
        A(f"v_add_u32 v{T+2}, s33, v{T+2}")
        A(f"s_mov_b32 s33, {xstride}")
        A(f"v_mul_lo_u32 v{T+2}, v{T+2}, s33")
        A(f"v_and_b32 v{T+3}, 3, v{T}")
        A(f"v_bfe_u32 v{T+4}, v{T}, 4, 2")
        A(f"v_xor_b32 v{T+3}, v{T+3}, v{T+4}")
        A(f"v_lshl_add_u32 v{T+2}, v{T+3}, 4, v{T+2}")
        for j in range(self.nx):
            if j:
                A(f"v_add_u32 v{T+2}, {16 * xstride}, v{T+2}")
            A(f"v_mov_b32 v{self.GX+2*j+1}, s{base_s+1}")
            A(f"v_add_co_u32 v{self.GX+2*j}, vcc, s{base_s}, v{T+2}")
            A("s_nop 1")
            A(f"v_addc_co_u32 v{self.GX+2*j+1}, vcc, 0, v{self.GX+2*j+1}, vcc")

    def wlane(self, A, j):
        T = self.T
        if self.mode == 'x2':
            A(f"v_lshrrev_b32 v{T+2}, 4, v{T}")
            A(f"v_bfe_u32 v{T+3}, v{T}, 2, 2")
            A(f"v_xor_b32 v{T+3}, v{T+3}, v{T+2}")
            A(f"s_lshl_b32 s33, s{24+j}, 2")
            A(f"v_add_u32 v{T+2}, s33, v{T+2}")
            A(f"v_and_b32 v{T+4}, 3, v{T}")
        elif self.mode == 'x1':
            A(f"v_lshrrev_b32 v{T+2}, 3, v{T}")
            A(f"v_bfe_u32 v{T+3}, v{T}, 2, 1")
            A(f"v_bfe_u32 v{T+4}, v{T}, 4, 1")
            A(f"v_xor_b32 v{T+3}, v{T+3}, v{T+4}")
            A(f"s_lshl_b32 s33, s{24+j}, 3")
            A(f"v_add_u32 v{T+2}, s33, v{T+2}")
            A(f"v_and_b32 v{T+4}, 3, v{T}")
        else:
            A(f"s_lshl_b32 s33, s{24+j}, 6")
            A(f"v_add_u32 v{T+5}, s33, v{T}")
            A("s_movk_i32 s33, 3277")
            A(f"v_mul_lo_u32 v{T+2}, v{T+5}, s33")
            A(f"v_lshrrev_b32 v{T+2}, 16, v{T+2}")
            A(f"v_mul_u32_u24 v{T+3}, 20, v{T+2}")
            A(f"v_sub_u32 v{T+5}, v{T+5}, v{T+3}")
            A(f"v_lshrrev_b32 v{T+3}, 2, v{T+5}")
            A(f"v_and_b32 v{T+4}, 3, v{T+5}")

    def waddr_plain(self, A, base_s, wstride, col0b_s):
        T = self.T
        for j in range(self.nw):
            self.wlane(A, j)
            A(f"s_mov_b32 s33, {wstride}")
            A(f"v_mul_lo_u32 v{T+2}, v{T+2}, s33")
            A(f"v_lshl_add_u32 v{T+2}, v{T+3}, 6, v{T+2}")
            A(f"v_lshl_add_u32 v{T+2}, v{T+4}, 4, v{T+2}")
            A(f"v_add_u32 v{T+2}, s{col0b_s}, v{T+2}")
            A(f"v_mov_b32 v{self.GW+2*j+1}, s{base_s+1}")
            A(f"v_add_co_u32 v{self.GW+2*j}, vcc, s{base_s}, v{T+2}")
            A("s_nop 1")
            A(f"v_addc_co_u32 v{self.GW+2*j+1}, vcc, 0, v{self.GW+2*j+1}, vcc")

    def fin_setup(self, A):
        for j in range(self.nw):
            A(f"s_lshl_b32 s{24+j}, s{24+j}, 10")
            A(f"s_add_u32 s{24+j}, s{24+j}, {self.XB}")

    def issue(self, A, st):
        for j in range(self.nx):
            A(f"s_add_u32 m0, s28, {st * self.STAGE + j * 1024}")
            A("s_nop 0")
            A(f"global_load_lds_dwordx4 {vr(self.GX+2*j, 2)}, off")
            A(f"v_lshl_add_u64 {vr(self.GX+2*j, 2)}, {vr(self.GX+2*j, 2)}, 0, s[40:41]")
        for j in range(self.nw):
            A(f"s_add_u32 m0, s{24+j}, {st * self.STAGE}")
            A("s_nop 0")
            A(f"global_load_lds_dwordx4 {vr(self.GW+2*j, 2)}, off")
            A(f"v_lshl_add_u64 {vr(self.GW+2*j, 2)}, {vr(self.GW+2*j, 2)}, 0, s[42:43]")

    def read_frags(self, A, st, ks, fs):
        RS = self.RS
        for ti in range(self.TM):
            A(f"ds_read_b128 {vr(self.FX + fs * 4 * self.TM + ti * 4, 4)}, v{self.AX+ks} offset:{st * self.STAGE + ti * 2048}")
        for ci in range(self.TN):
            for t in range(2):
                if self.mode == 'x2':
                    A(f"ds_read_b64_tr_b16 {vr(self.FW + fs * 4 * self.TN + ci * 4 + 2 * t, 2)}, v{self.AW+ci} offset:{st * self.STAGE + (ks * 16 + 4 * t) * RS}")
                else:
                    A(f"ds_read_b64_tr_b16 {vr(self.FW + fs * 4 * self.TN + ci * 4 + 2 * t, 2)}, v{self.AW} offset:{st * self.STAGE + (ks * 16 + 4 * t) * RS + ci * 64}")

    def mfmas(self, A, fs, swapped):
        for ti in range(self.TM):
            for ci in range(self.TN):
                acc = vr(self.acc(ti, ci), 16)
                fx = vr(self.FX + fs * 4 * self.TM + ti * 4, 4)
                fw = vr(self.FW + fs * 4 * self.TN + ci * 4, 4)
                if swapped:
                    A(f"v_mfma_f32_32x32x16_bf16 {acc}, {fw}, {fx}, {acc}")
                else:
                    A(f"v_mfma_f32_32x32x16_bf16 {acc}, {fx}, {fw}, {acc}")

    def mainloop(self, A, nkt, swapped, hook=None):
        npw = self.nx + self.nw
        nrd = self.TM + 2 * self.TN
        for r in range(self.TM * self.TN * 16):
            A(f"v_mov_b32 v{self.ACC + r}, 0")
        for kt in range(min(3, nkt)):
            if hook:
                hook(A, kt)
            self.issue(A, kt % NST)
        for kt in range(nkt):
            st = kt % NST
            if 'STAMP' in FL and kt in (0, 1, 2, 3, 6, 10, 14, 19):
                stamp(A)
            inflight = min(nkt, kt + 3) - kt - 1
            A(f"s_waitcnt vmcnt({inflight * npw})")
            A("s_barrier")
            self.read_frags(A, st, 0, 0)
            self.read_frags(A, st, 1, 1)
            if kt + 3 < nkt:
                if hook:
                    hook(A, kt + 3)
                self.issue(A, (kt + 3) % NST)
            A(f"s_waitcnt lgkmcnt({min(nrd, 15)})")
            self.mfmas(A, 0, swapped)
            A("s_waitcnt lgkmcnt(0)")
            self.mfmas(A, 1, swapped)
        if 'STAMP' in FL:
            stamp(A)
        A("s_barrier")
        A("s_nop 15")


class GemmB:
    def __init__(self, kind):
        self.kind = kind
        if kind == 'qkv':
            self.TM, self.TN, self.BN = 1, 5, 160
        else:
            self.TM, self.TN, self.BN = 2, 2, 192
        self.RS = self.BN * 2
        self.XB = 256 * 64
        self.WB = self.BN * 64
        self.STAGE = self.XB + self.WB
        self.nwi = self.BN // 16
        self.cpr = self.RS // 16
        self.ACC = 0
        n = self.TM * self.TN * 16
        self.FX = n
        self.FW = self.FX + 8 * self.TM
        self.AX = self.FW + 8 * self.TN
        self.AW = self.AX + 2
        self.GA = self.AW + 2
        self.TID = self.GA + 6
        self.T = self.TID + 2
        self.NV = self.T + 22

    def acc(self, ti, ci):
        return self.ACC + (ti * self.TN + ci) * 16

    def xaddr_one(self, A, dst, idx_s):
        T = self.T
        A(f"s_lshl_b32 s33, s{idx_s}, 4")
        A("s_add_u32 s33, s33, s36")
        A(f"v_lshrrev_b32 v{T+2}, 2, v{T}")
        A(f"v_add_u32 v{T+2}, s33, v{T+2}")
        A(f"v_mul_u32_u24 v{T+2}, 1280, v{T+2}")
        A(f"v_and_b32 v{T+3}, 3, v{T}")
        A(f"v_bfe_u32 v{T+4}, v{T}, 4, 2")
        A(f"v_xor_b32 v{T+3}, v{T+3}, v{T+4}")
        A(f"v_lshl_add_u32 v{T+2}, v{T+3}, 4, v{T+2}")
        A(f"v_mov_b32 v{dst+1}, s7")
        A(f"v_add_co_u32 v{dst}, vcc, s6, v{T+2}")
        A("s_nop 1")
        A(f"v_addc_co_u32 v{dst+1}, vcc, 0, v{dst+1}, vcc")

    def waddr_one(self, A, dst, idx_s):
        T = self.T
        A(f"s_lshl_b32 s33, s{idx_s}, 6")
        A(f"v_add_u32 v{T+5}, s33, v{T}")
        if self.kind == 'qkv':
            A("s_movk_i32 s33, 3277")
            A(f"v_mul_lo_u32 v{T+2}, v{T+5}, s33")
            A(f"v_lshrrev_b32 v{T+2}, 16, v{T+2}")
            A(f"v_mul_u32_u24 v{T+3}, 20, v{T+2}")
            A(f"v_sub_u32 v{T+5}, v{T+5}, v{T+3}")
            A(f"v_mul_u32_u24 v{T+2}, 3840, v{T+2}")
            A(f"v_lshl_add_u32 v{T+2}, v{T+5}, 4, v{T+2}")
            A(f"v_add_u32 v{T+2}, s37, v{T+2}")
            A(f"v_mov_b32 v{dst+1}, s5")
            A(f"v_add_co_u32 v{dst}, vcc, s4, v{T+2}")
            A("s_nop 1")
            A(f"v_addc_co_u32 v{dst+1}, vcc, 0, v{dst+1}, vcc")
        else:
            A("s_movk_i32 s33, 2731")
            A(f"v_mul_lo_u32 v{T+2}, v{T+5}, s33")
            A(f"v_lshrrev_b32 v{T+2}, 16, v{T+2}")
            A(f"v_mul_u32_u24 v{T+3}, 24, v{T+2}")
            A(f"v_sub_u32 v{T+5}, v{T+5}, v{T+3}")
            A(f"v_lshrrev_b32 v{T+3}, 2, v{T+5}")
            A(f"v_bfe_u32 v{T+4}, v{T+2}, 1, 1")
            A(f"v_xor_b32 v{T+3}, v{T+3}, v{T+4}")
            A(f"v_and_b32 v{T+5}, 3, v{T+5}")
            A(f"v_mul_u32_u24 v{T+2}, {DF * 2}, v{T+2}")
            A(f"v_lshl_add_u32 v{T+2}, v{T+5}, 4, v{T+2}")
            A(f"v_lshrrev_b32 v{T+4}, 1, v{T+3}")
            A(f"v_lshl_add_u32 v{T+2}, v{T+4}, 6, v{T+2}")
            A(f"v_add_u32 v{T+2}, s37, v{T+2}")
            A(f"v_and_b32 v{T+3}, 1, v{T+3}")
            A(f"v_cmp_eq_u32 vcc, 1, v{T+3}")
            A(f"v_mov_b32 v{T+4}, s8")
            A(f"v_mov_b32 v{T+5}, s9")
            A(f"v_mov_b32 v{T+6}, s10")
            A(f"v_mov_b32 v{T+7}, s11")
            A(f"v_cndmask_b32 v{T+4}, v{T+4}, v{T+6}, vcc")
            A(f"v_cndmask_b32 v{T+5}, v{T+5}, v{T+7}, vcc")
            A(f"v_add_co_u32 v{dst}, vcc, v{T+4}, v{T+2}")
            A("s_nop 1")
            A(f"v_addc_co_u32 v{dst+1}, vcc, 0, v{T+5}, vcc")

    def setup(self, A, wadv):
        T = self.T
        lab = A.newlabel("G1_x1")
        lab2 = A.newlabel("G1_x2")
        A(f"v_mov_b32 v{self.TID}, v0")
        A(f"v_and_b32 v{T}, 63, v0")
        A(f"v_lshrrev_b32 v{T+1}, 6, v0")
        A("s_nop 0")
        A(f"v_readfirstlane_b32 s30, v{T+1}")
        A("s_waitcnt lgkmcnt(0)")
        self.xaddr_one(A, self.GA, 30)
        A("s_lshl_b32 s24, s30, 10")
        A("s_mov_b32 s40, 64")
        A("s_mov_b32 s41, 0")
        A(f"s_mov_b32 s44, {wadv}")
        A("s_mov_b32 s45, 0")
        A("s_cmp_lt_u32 s30, 4")
        A(f"s_cbranch_scc0 {lab}")
        A("s_add_u32 s25, s30, 12")
        self.xaddr_one(A, self.GA + 2, 25)
        A("s_lshl_b32 s25, s25, 10")
        A("s_mov_b32 s42, 64")
        A(f"s_branch {lab2}")
        A.label(lab)
        A("s_sub_u32 s25, s30, 4")
        self.waddr_one(A, self.GA + 2, 25)
        A("s_lshl_b32 s25, s25, 10")
        A(f"s_add_u32 s25, s25, {self.XB}")
        A(f"s_mov_b32 s42, {wadv}")
        A.label(lab2)
        A("s_mov_b32 s43, 0")
        A("s_add_u32 s26, s30, 8")
        A(f"s_min_u32 s26, s26, {self.nwi - 1}")
        self.waddr_one(A, self.GA + 4, 26)
        A("s_lshl_b32 s26, s26, 10")
        A(f"s_add_u32 s26, s26, {self.XB}")

    def issue(self, A, st):
        for j in range(3):
            A(f"s_add_u32 m0, s{24+j}, {st * self.STAGE}")
            A("s_nop 0")
            A(f"global_load_lds_dwordx4 {vr(self.GA+2*j, 2)}, off")
            A(f"v_lshl_add_u64 {vr(self.GA+2*j, 2)}, {vr(self.GA+2*j, 2)}, 0, s[{40+2*j}:{41+2*j}]")

    def frag_setup(self, A):
        T = self.T
        if self.kind == 'qkv':
            A("s_and_b32 s31, s30, 7")
            A("s_mov_b32 s32, 0")
        else:
            A("s_and_b32 s31, s30, 3")
            A("s_lshr_b32 s32, s30, 2")
        A(f"v_and_b32 v{T+2}, 31, v{T}")
        A(f"s_mul_i32 s33, s31, {32 * self.TM}")
        A(f"v_add_u32 v{T+2}, s33, v{T+2}")
        A(f"v_lshrrev_b32 v{T+3}, 5, v{T}")
        A(f"v_bfe_u32 v{T+4}, v{T}, 2, 2")
        A(f"v_xor_b32 v{T+3}, v{T+3}, v{T+4}")
        A(f"v_lshlrev_b32 v{T+3}, 4, v{T+3}")
        A(f"v_lshl_add_u32 v{self.AX}, v{T+2}, 6, v{T+3}")
        A(f"v_xor_b32 v{self.AX+1}, 32, v{self.AX}")
        A(f"v_lshrrev_b32 v{T+2}, 5, v{T}")
        A(f"v_lshlrev_b32 v{T+2}, 3, v{T+2}")
        A(f"v_bfe_u32 v{T+3}, v{T}, 2, 2")
        A(f"v_add_u32 v{T+2}, v{T+2}, v{T+3}")
        A(f"v_mul_u32_u24 v{T+2}, {self.RS}, v{T+2}")
        if self.kind == 'glu':
            A(f"v_lshrrev_b32 v{T+3}, 1, v{T+3}")
            A("s_lshl_b32 s33, s32, 1")
            A(f"v_xor_b32 v{T+3}, s33, v{T+3}")
            A(f"v_lshl_add_u32 v{T+2}, v{T+3}, 6, v{T+2}")
        A(f"v_bfe_u32 v{T+3}, v{T}, 4, 1")
        A(f"v_lshl_add_u32 v{T+2}, v{T+3}, 5, v{T+2}")
        A(f"v_and_b32 v{T+3}, 3, v{T}")
        A(f"v_lshl_add_u32 v{T+2}, v{T+3}, 3, v{T+2}")
        A(f"v_add_u32 v{self.AW}, {self.XB}, v{T+2}")
        if self.kind == 'glu':
            A(f"v_xor_b32 v{self.AW+1}, 64, v{self.AW}")

    def read_frags(self, A, st, ks, fs):
        RS = self.RS
        for ti in range(self.TM):
            A(f"ds_read_b128 {vr(self.FX + fs * 4 * self.TM + ti * 4, 4)}, v{self.AX+ks} offset:{st * self.STAGE + ti * 2048}")
        for ci in range(self.TN):
            for t in range(2):
                if self.kind == 'glu':
                    A(f"ds_read_b64_tr_b16 {vr(self.FW + fs * 4 * self.TN + ci * 4 + 2 * t, 2)}, v{self.AW+ci} offset:{st * self.STAGE + (ks * 16 + 4 * t) * RS}")
                else:
                    A(f"ds_read_b64_tr_b16 {vr(self.FW + fs * 4 * self.TN + ci * 4 + 2 * t, 2)}, v{self.AW} offset:{st * self.STAGE + (ks * 16 + 4 * t) * RS + ci * 64}")

    def mfmas(self, A, fs, swapped):
        for ti in range(self.TM):
            for ci in range(self.TN):
                acc = vr(self.acc(ti, ci), 16)
                fx = vr(self.FX + fs * 4 * self.TM + ti * 4, 4)
                fw = vr(self.FW + fs * 4 * self.TN + ci * 4, 4)
                if swapped:
                    A(f"v_mfma_f32_32x32x16_bf16 {acc}, {fw}, {fx}, {acc}")
                else:
                    A(f"v_mfma_f32_32x32x16_bf16 {acc}, {fx}, {fw}, {acc}")

    def mainloop(self, A, swapped, compute=True):
        nkt = 20
        nrd = self.TM + 2 * self.TN
        assert 3 * self.STAGE + self.XB + 20 * self.RS + 64 * 5 < 65536 + self.XB + 65536
        for kt in range(nkt):
            st = kt % NST
            inflight = min(nkt, kt + 3) - kt - 1
            A(f"s_waitcnt vmcnt({inflight * 3})")
            A("s_barrier")
            if compute:
                self.read_frags_big(A, st, 0, 0)
                self.read_frags_big(A, st, 1, 1)
            if kt + 3 < nkt:
                self.issue(A, (kt + 3) % NST)
            if compute:
                A(f"s_waitcnt lgkmcnt({min(nrd, 15)})")
                self.mfmas(A, 0, swapped)
                A("s_waitcnt lgkmcnt(0)")
                self.mfmas(A, 1, swapped)
        A("s_barrier")
        A("s_nop 15")

    def read_frags_big(self, A, st, ks, fs):
        if st < 2:
            self.read_frags(A, st, ks, fs)
            return
        sv = (self.AX, self.AW)
        T = self.T
        self.AX, self.AW = T + 16, T + 18
        self.read_frags(A, st - 2, ks, fs)
        self.AX, self.AW = sv

    def big_setup(self, A):
        T = self.T
        for i in range(2):
            A(f"v_add_u32 v{T+16+i}, {2 * self.STAGE}, v{self.AX+i}")
            A(f"v_add_u32 v{T+18+i}, {2 * self.STAGE}, v{self.AW+i}")


def gen_gemm1(A):
    name = "gemm1_kernel"
    NWG = 240
    kernel_begin(A, name)
    A(f"s_cmp_ge_u32 s2, {NWG}")
    A("s_cbranch_scc1 G1_done")
    A("s_load_dwordx2 s[4:5], s[0:1], 8")
    A("s_load_dwordx4 s[8:11], s[0:1], 32")
    A("s_load_dwordx2 s[6:7], s[0:1], 72")
    A("s_and_b32 s34, s2, 7")
    A("s_mul_i32 s34, s34, 30")
    A("s_lshr_b32 s35, s2, 3")
    A("s_add_u32 s35, s35, s34")
    A("s_and_b32 s34, s35, 7")
    A("s_lshr_b32 s35, s35, 3")
    A("s_lshl_b32 s36, s34, 8")
    A("s_cmp_ge_u32 s35, 12")
    A("s_cbranch_scc1 G1_glu")
    G = GemmB('qkv')
    T = G.T
    A("s_mul_i32 s37, s35, 320")
    G.setup(A, 32 * 3840)
    for st in range(3):
        G.issue(A, st)
    G.frag_setup(A)
    G.big_setup(A)
    for r in range(80):
        A(f"v_mov_b32 v{r}, 0")
    A("s_cmp_ge_u32 s30, 8")
    A("s_cbranch_scc1 G1_helper")
    A("s_cmp_ge_u32 s35, 8")
    A("s_cbranch_scc1 G1_v")
    G.mainloop(A, True)
    A("s_cmp_ge_u32 s35, 4")
    A(f"s_mov_b32 s38, {WS_Q}")
    A(f"s_cselect_b32 s38, {WS_K}, s38")
    A(f"s_mov_b32 s39, 0x{fbits(CSCALE):08x}")
    A(f"s_cselect_b32 s39, 1.0, s39")
    A("s_cselect_b32 s48, 3, 0")
    A("s_cselect_b32 s49, 0x3f803f80, 0")
    A("s_cselect_b32 s50, 0x3f80, 0")
    A(f"v_and_b32 v{T+2}, 31, v{T}")
    A("s_lshl_b32 s37, s30, 5")
    A(f"v_add_u32 v{T+2}, s37, v{T+2}")
    A(f"v_bfe_u32 v{T+3}, v{T+2}, 2, 2")
    A(f"v_and_b32 v{T+3}, s48, v{T+3}")
    A(f"v_lshlrev_b32 v{T+2}, 6, v{T+2}")
    for c in range(4):
        A(f"v_xor_b32 v{T+4}, {c}, v{T+3}")
        A(f"v_lshl_add_u32 v{G.FX+c}, v{T+4}, 4, v{T+2}")
        A(f"v_add_u32 v{G.FX+4+c}, 0x10000, v{G.FX+c}")
    A(f"v_mov_b32 v{T+8}, s49")
    A(f"v_mov_b32 v{T+9}, s50")
    for r in range(4):
        A(f"v_mov_b32 v{T+12+r}, 0")
    A("s_mov_b64 s[52:53], exec")
    A("s_mov_b32 s54, -1")
    A("s_mov_b32 s55, 0")
    A("s_mov_b32 s56, 0")
    A("s_mov_b32 s57, -1")
    for ci in range(5):
        for q4 in range(4):
            a = G.acc(0, ci) + 4 * q4
            for j in range(4):
                A(f"v_mul_f32 v{a+j}, s39, v{a+j}")
            A(f"v_cvt_pk_bf16_f32 v{T+6}, v{a}, v{a+1}")
            A(f"v_cvt_pk_bf16_f32 v{T+7}, v{a+2}, v{a+3}")
            for hh in range(2):
                col = ci * 32 + 8 * q4 + 4 * hh
                head, d = col // 20, col % 20
                hb = G.FX + (4 if head >= 4 else 0)
                ho = (head & 3) * 16384
                A(f"s_mov_b64 exec, s[{54 + 2 * hh}:{55 + 2 * hh}]")
                if d == 16:
                    A(f"ds_write_b128 v{hb+2}, {vr(T+6, 4)} offset:{ho}")
                    A(f"ds_write_b128 v{hb+3}, {vr(T+12, 4)} offset:{ho}")
                else:
                    A(f"ds_write_b64 v{hb+(d >> 3)}, {vr(T+6, 2)} offset:{ho + ((d >> 2) & 1) * 8}")
            A("s_mov_b64 exec, s[52:53]")
    A("s_branch G1_copyout")
    A.label("G1_helper")
    G.mainloop(A, True, compute=False)
    A("s_barrier")
    A("s_branch G1_done")
    A.label("G1_v")
    G.mainloop(A, False)
    A(f"s_mov_b32 s38, {WS_V}")
    A(f"v_and_b32 v{T+3}, 31, v{T}")
    A(f"v_lshrrev_b32 v{T+2}, 5, v{T}")
    A("s_lshl_b32 s37, s30, 11")
    A("s_movk_i32 s39, 3277")
    for ci in range(5):
        A(f"v_add_u32 v{T+4}, {ci * 32}, v{T+3}")
        A(f"v_mul_lo_u32 v{T+5}, v{T+4}, s39")
        A(f"v_lshrrev_b32 v{T+5}, 16, v{T+5}")
        A(f"v_mul_u32_u24 v{T+6}, 20, v{T+5}")
        A(f"v_sub_u32 v{T+6}, v{T+4}, v{T+6}")
        A(f"v_lshlrev_b32 v{T+5}, 14, v{T+5}")
        A(f"v_add_u32 v{T+5}, s37, v{T+5}")
        A(f"v_bfe_u32 v{T+7}, v{T+6}, 2, 2")
        A(f"v_xor_b32 v{T+7}, v{T+7}, v{T+2}")
        A(f"v_lshlrev_b32 v{T+7}, 4, v{T+7}")
        A(f"v_lshl_add_u32 v{T+7}, v{T+6}, 6, v{T+7}")
        A(f"v_add_u32 v{T+7}, v{T+7}, v{T+5}")
        A(f"v_xor_b32 v{T+8}, 32, v{T+7}")
        A(f"v_add_u32 v{T+9}, 12, v{T+6}")
        A(f"v_bfe_u32 v{T+10}, v{T+9}, 2, 2")
        A(f"v_xor_b32 v{T+10}, v{T+10}, v{T+2}")
        A(f"v_lshlrev_b32 v{T+10}, 4, v{T+10}")
        A(f"v_lshl_add_u32 v{T+10}, v{T+9}, 6, v{T+10}")
        A(f"v_add_u32 v{T+10}, v{T+10}, v{T+5}")
        A(f"v_xor_b32 v{T+11}, 32, v{T+10}")
        A(f"v_cmp_eq_u32 vcc, 8, v{T+6}")
        A(f"v_mov_b32 v{T+12}, 0x3f803f80")
        A("s_nop 0")
        A(f"v_cndmask_b32 v{T+16}, 0, v{T+12}, vcc")
        A(f"v_mov_b32 v{T+17}, v{T+16}")
        A(f"v_mov_b32 v{T+18}, v{T+16}")
        A(f"v_mov_b32 v{T+19}, v{T+16}")
        A(f"v_cmp_le_u32 s[52:53], 8, v{T+6}")
        a = G.acc(0, ci)
        for s_ in range(2):
            for j in range(4):
                A(f"v_cvt_pk_bf16_f32 v{T+12+j}, v{a + 8 * s_ + 2 * j}, v{a + 8 * s_ + 2 * j + 1}")
            A(f"ds_write_b128 v{T+7+s_}, {vr(T+12, 4)}")
            A("s_nop 1")
        A("s_mov_b64 s[54:55], exec")
        A("s_and_b64 exec, exec, s[52:53]")
        A(f"ds_write_b128 v{T+10}, {vr(T+16, 4)}")
        A(f"ds_write_b128 v{T+11}, {vr(T+16, 4)}")
        A("s_mov_b64 exec, s[54:55]")
        A("s_nop 1")
    A.label("G1_copyout")
    A("s_add_u32 s44, s6, s38")
    A("s_addc_u32 s45, s7, 0")
    A(f"s_mov_b32 s46, {4 << 20}")
    A("s_mov_b32 s47, 0x00020000")
    A(f"v_lshlrev_b32 v{T+2}, 4, v{G.TID}")
    A(f"v_add_u32 v{T+4}, 0x10000, v{T+2}")
    A("s_and_b32 s37, s35, 3")
    A("s_lshl_b32 s37, s37, 20")
    A("s_lshl_b32 s39, s36, 6")
    A("s_add_u32 s37, s37, s39")
    A(f"v_add_u32 v{T+3}, s37, v{T+2}")
    A("s_waitcnt lgkmcnt(0)")
    A("s_barrier")
    for i in range(16):
        A(f"ds_read_b128 {vr(4 * i, 4)}, v{T+2 if i < 8 else T+4} offset:{(i & 7) * 8192}")
    for i in range(16):
        A(f"s_mov_b32 s39, {(i >> 1) * 131072 + (i & 1) * 8192}")
        A(f"s_waitcnt lgkmcnt({15 - i})")
        A(f"buffer_store_dwordx4 {vr(4 * i, 4)}, v{T+3}, s[44:47], s39 offen")
    A("s_branch G1_done")
    A.label("G1_glu")
    G = GemmB('glu')
    T = G.T
    A("s_sub_u32 s35, s35, 12")
    A("s_mul_i32 s37, s35, 192")
    G.setup(A, 32 * DF * 2)
    for st in range(3):
        G.issue(A, st)
    G.frag_setup(A)
    G.big_setup(A)
    for r in range(64):
        A(f"v_mov_b32 v{r}, 0")
    G.mainloop(A, True)
    IS = 208
    A(f"v_and_b32 v{T+2}, 31, v{T}")
    A("s_lshl_b32 s39, s31, 6")
    A(f"v_add_u32 v{T+2}, s39, v{T+2}")
    A(f"v_mul_u32_u24 v{T+2}, {IS}, v{T+2}")
    A("s_lshl_b32 s39, s32, 6")
    A(f"v_lshrrev_b32 v{T+3}, 5, v{T}")
    A(f"v_lshlrev_b32 v{T+3}, 3, v{T+3}")
    A(f"v_add3_u32 v{T+2}, v{T+2}, v{T+3}, s39")
    A("s_mov_b32 s38, 0x3d372713")
    A("s_mov_b32 s39, 0xc0135761")
    for ti in range(2):
        g = G.acc(ti, 0)
        u = G.acc(ti, 1)
        for q4 in range(4):
            for j in range(4):
                r = 4 * q4 + j
                t0 = T + 8 + j
                A(f"v_mul_f32 v{t0}, v{g + r}, v{g + r}")
                A(f"v_fma_f32 v{t0}, v{t0}, s38, 1.0")
                A(f"v_mul_f32 v{t0}, v{t0}, v{g + r}")
                A(f"v_mul_f32 v{t0}, s39, v{t0}")
                A(f"v_exp_f32 v{t0}, v{t0}")
                A(f"v_mul_f32 v{g + r}, v{g + r}, v{u + r}")
            for j in range(4):
                t0 = T + 8 + j
                A(f"v_add_f32 v{t0}, 1.0, v{t0}")
                A(f"v_rcp_f32 v{t0}, v{t0}")
            A("s_nop 0")
            for j in range(4):
                r = 4 * q4 + j
                t0 = T + 8 + j
                A(f"v_mul_f32 v{t0}, v{g + r}, v{t0}")
            A(f"v_cvt_pk_bf16_f32 v{T+12}, v{T+8}, v{T+9}")
            A(f"v_cvt_pk_bf16_f32 v{T+13}, v{T+10}, v{T+11}")
            A(f"ds_write_b64 v{T+2}, {vr(T+12, 2)} offset:{ti * 32 * IS + q4 * 16}")
    A(f"s_add_u32 s44, s6, {WS_H}")
    A("s_addc_u32 s45, s7, 0")
    A(f"s_mov_b32 s46, {S * DF * 2}")
    A("s_mov_b32 s47, 0x00020000")
    A("s_movk_i32 s33, 5462")
    A(f"v_mul_lo_u32 v{T+2}, v{G.TID}, s33")
    A(f"v_lshrrev_b32 v{T+2}, 16, v{T+2}")
    A(f"v_mul_u32_u24 v{T+3}, 12, v{T+2}")
    A(f"v_sub_u32 v{T+3}, v{G.TID}, v{T+3}")
    A(f"v_lshlrev_b32 v{T+3}, 4, v{T+3}")
    A(f"v_mul_u32_u24 v{T+4}, {IS}, v{T+2}")
    A(f"v_add_u32 v{T+4}, v{T+4}, v{T+3}")
    A(f"v_add_u32 v{T+2}, s36, v{T+2}")
    A(f"v_mul_u32_u24 v{T+2}, {DF * 2}, v{T+2}")
    A(f"v_add3_u32 v{T+2}, v{T+2}, v{T+3}, s37")
    A("s_waitcnt lgkmcnt(0)")
    A("s_barrier")
    for i in range(4):
        A(f"ds_read_b128 {vr(4 * i, 4)}, v{T+4} offset:{i * 64 * IS}")
    for i in range(4):
        A(f"s_mov_b32 s39, {i * 64 * DF * 2}")
        A(f"s_waitcnt lgkmcnt({3 - i})")
        A(f"buffer_store_dwordx4 {vr(4 * i, 4)}, v{T+2}, s[44:47], s39 offen")
    A.label("G1_done")
    A("s_endpgm")
    for q in range(768):
        assert (q * 2731) >> 16 == q // 24 and (q * 5462) >> 16 == q // 12
    return kernel_desc(name, max(GemmB('qkv').NV, G.NV)), 131072, NWG


def gen_gemm2(A, TM, TN):
    name = "gemm2_kernel"
    G = Gemm(TM, TN)
    T = G.T
    ntt = S // G.BM
    nct = D // G.BN
    kernel_begin(A, name)
    A(f"s_cmp_ge_u32 s2, {ntt * nct}")
    A("s_cbranch_scc1 G2_done")
    A("s_load_dwordx2 s[4:5], s[0:1], 16")
    A("s_load_dwordx2 s[8:9], s[0:1], 48")
    A("s_load_dwordx2 s[10:11], s[0:1], 0")
    A("s_load_dwordx2 s[12:13], s[0:1], 56")
    A("s_load_dwordx2 s[6:7], s[0:1], 72")
    A("s_and_b32 s34, s2, 7")
    A("s_lshr_b32 s35, s2, 3")
    A(f"s_mul_i32 s33, s34, {ntt // 8}")
    A(f"s_and_b32 s34, s35, {ntt // 8 - 1}")
    A("s_add_u32 s34, s34, s33")
    A(f"s_lshr_b32 s35, s35, {(ntt // 8).bit_length() - 1}")
    G.setup(A)
    A(f"s_mul_i32 s36, s34, {G.BM}")
    A(f"s_mul_i32 s37, s35, {G.BN * 2}")
    A("s_waitcnt lgkmcnt(0)")
    A(f"s_add_u32 s14, s6, {WS_O}")
    A("s_addc_u32 s15, s7, 0")
    A(f"s_add_u32 s16, s6, {WS_H}")
    A("s_addc_u32 s17, s7, 0")
    A("s_mov_b32 s40, 64")
    A("s_mov_b32 s41, 0")
    A(f"s_mov_b32 s42, {32 * 1280}")
    A("s_mov_b32 s43, 0")
    G.xaddr(A, 14, 1280, 36)
    G.waddr_plain(A, 4, 1280, 37)
    G.fin_setup(A)
    A("s_sub_u32 s18, s8, s4")
    A("s_subb_u32 s19, s9, s5")
    A(f"s_sub_u32 s18, s18, {640 * 1280}")
    A("s_subb_u32 s19, s19, 0")

    def hook(A, kt):
        if kt == 20:
            G.xaddr(A, 16, DF * 2, 36)
            for j in range(G.nw):
                A(f"v_lshl_add_u64 {vr(G.GW+2*j, 2)}, {vr(G.GW+2*j, 2)}, 0, s[18:19]")

    G.mainloop(A, 20 + 54, True, hook)
    IS = G.BN * 4 + 16
    A(f"v_and_b32 v{T+2}, 31, v{T}")
    A(f"s_mul_i32 s39, s31, {32 * TM}")
    A(f"v_add_u32 v{T+2}, s39, v{T+2}")
    A(f"v_mul_u32_u24 v{T+2}, {IS}, v{T+2}")
    A(f"s_mul_i32 s39, s32, {128 * TN}")
    A(f"v_lshrrev_b32 v{T+3}, 5, v{T}")
    A(f"v_lshlrev_b32 v{T+3}, 4, v{T+3}")
    A(f"v_add3_u32 v{T+2}, v{T+2}, v{T+3}, s39")
    for ti in range(TM):
        for ci in range(TN):
            for q4 in range(4):
                A(f"ds_write_b128 v{T+2}, {vr(G.acc(ti, ci) + 4 * q4, 4)} offset:{ti * 32 * IS + ci * 128 + q4 * 32}")
    A("s_mov_b32 s44, s10")
    A("s_mov_b32 s45, s11")
    A(f"s_mov_b32 s46, {S * D * 2}")
    A("s_mov_b32 s47, 0x00020000")
    A("s_mov_b32 s48, s12")
    A("s_mov_b32 s49, s13")
    A(f"s_mov_b32 s50, {S * D * 2}")
    A("s_mov_b32 s51, 0x00020000")
    cpr = G.BN // 8
    rpi = 256 // cpr
    nit = G.BM // rpi
    A(f"v_lshrrev_b32 v{T+2}, {cpr.bit_length() - 1}, v{G.TID}")
    A(f"v_and_b32 v{T+3}, {cpr - 1}, v{G.TID}")
    A(f"v_lshlrev_b32 v{T+5}, 5, v{T+3}")
    A(f"v_mul_u32_u24 v{T+4}, {IS}, v{T+2}")
    A(f"v_add_u32 v{T+4}, v{T+4}, v{T+5}")
    A(f"v_add_u32 v{T+2}, s36, v{T+2}")
    A(f"v_mul_u32_u24 v{T+2}, 1280, v{T+2}")
    A(f"v_lshlrev_b32 v{T+3}, 4, v{T+3}")
    A(f"v_add3_u32 v{T+2}, v{T+2}, v{T+3}, s37")
    for i in range(nit):
        A(f"s_mov_b32 s39, {i * rpi * 1280}")
        A(f"buffer_load_dwordx4 {vr(48 + 4 * i, 4)}, v{T+2}, s[44:47], s39 offen")
    A("s_waitcnt lgkmcnt(0)")
    A("s_barrier")
    for i in range(nit):
        A(f"ds_read_b128 {vr(8 * i, 4)}, v{T+4} offset:{i * rpi * IS}")
        A(f"ds_read_b128 {vr(8 * i + 4, 4)}, v{T+4} offset:{i * rpi * IS + 16}")
    for i in range(nit):
        A(f"s_waitcnt vmcnt({nit - 1 - i}) lgkmcnt({2 * (nit - 1 - i)})")
        for j in range(4):
            xr = 48 + 4 * i + j
            A(f"v_lshlrev_b32 v{T+6}, 16, v{xr}")
            A(f"v_and_b32 v{T+7}, 0xffff0000, v{xr}")
            A(f"v_add_f32 v{T+6}, v{T+6}, v{8 * i + 2 * j}")
            A(f"v_add_f32 v{T+7}, v{T+7}, v{8 * i + 2 * j + 1}")
            A(f"v_cvt_pk_bf16_f32 v{xr}, v{T+6}, v{T+7}")
        A(f"s_mov_b32 s39, {i * rpi * 1280}")
        A(f"buffer_store_dwordx4 {vr(48 + 4 * i, 4)}, v{T+2}, s[48:51], s39 offen")
    A.label("G2_done")
    A("s_endpgm")
    return kernel_desc(name, max(G.NV, 48 + 4 * nit + 8)), G.LDS, ntt * nct


ACH = 256
ABUF = 32768
LDS_ATT = 3 * ABUF


def gen_attn(A):
    name = "attn_kernel"
    kernel_begin(A, name)
    A0 = A

    class F:
        inloop = False

        def __call__(self, s):
            if self.inloop:
                if 'AT_NOMFMA' in FL and s.startswith('v_mfma'):
                    return
                if 'AT_NODS' in FL and s.startswith('ds_read'):
                    return
                if 'AT_NOMAX' in FL and (s.startswith('v_max3') or s.startswith('v_permlane') or s.startswith('s_nop 1')):
                    return
                if 'AT_NOSYNC' in FL and (s.startswith('s_barrier') or s.startswith('buffer_load') or s.startswith('s_waitcnt vmcnt')):
                    return
                if 'AT_NOCVT' in FL and s.startswith('v_cvt_pk'):
                    return
            A0(s)

        def label(self, l):
            A0.label(l)
            if l == 'AT_loop':
                self.inloop = True

        def newlabel(self, p):
            return A0.newlabel(p)

        def raw(self, s):
            A0.raw(s)
    A = F()
    O = 0
    SS = (16, 32)
    QF = 48
    KF = 56
    VF = 64
    PF = 72
    AC0, AC1, AN0, AN1 = 80, 81, 82, 83
    M = 84
    FLOOR = 85
    GO = 86
    LN_ = 87
    B0, B1 = 88, 89
    THR = 90
    T = 92
    A("s_cmp_ge_u32 s2, 256")
    A("s_cbranch_scc1 AT_done")
    A("s_load_dwordx2 s[6:7], s[0:1], 72")
    A("s_and_b32 s34, s2, 31")
    A("s_lshr_b32 s35, s2, 5")
    A(f"v_and_b32 v{LN_}, 63, v0")
    A(f"v_lshrrev_b32 v{T+1}, 6, v0")
    A("s_nop 0")
    A(f"v_readfirstlane_b32 s30, v{T+1}")
    A("s_waitcnt lgkmcnt(0)")
    A("s_lshl_b32 s36, s34, 17")
    for (sd, off) in ((8, WS_Q), (12, WS_K), (16, WS_V)):
        A(f"s_add_u32 s{sd}, s6, {off}")
        A(f"s_addc_u32 s{sd+1}, s7, 0")
        A(f"s_add_u32 s{sd}, s{sd}, s36")
        A(f"s_addc_u32 s{sd+1}, s{sd+1}, 0")
        A(f"s_mov_b32 s{sd+2}, {HEADB}")
        A(f"s_mov_b32 s{sd+3}, 0x00020000")
    A(f"s_add_u32 s20, s6, {WS_O}")
    A("s_addc_u32 s21, s7, 0")
    A(f"s_mov_b32 s22, {S * D * 2}")
    A("s_mov_b32 s23, 0x00020000")
    A("s_lshl_b32 s31, s30, 11")
    A(f"v_lshlrev_b32 v{GO}, 4, v{LN_}")
    A(f"v_add_u32 v{GO}, s31, v{GO}")

    def dma(buf_s, chunk_s):
        A(f"s_add_u32 m0, s{buf_s}, s31")
        A("s_nop 0")
        A(f"buffer_load_dwordx4 v{GO}, s[12:15], s{chunk_s} offen lds")
        A(f"buffer_load_dwordx4 v{GO}, s[12:15], s{chunk_s} offen offset:1024 lds")
        A(f"s_add_u32 m0, m0, 16384")
        A("s_nop 0")
        A(f"buffer_load_dwordx4 v{GO}, s[16:19], s{chunk_s} offen lds")
        A(f"buffer_load_dwordx4 v{GO}, s[16:19], s{chunk_s} offen offset:1024 lds")

    A(f"v_and_b32 v{T+2}, 31, v{LN_}")
    A(f"v_lshrrev_b32 v{T+3}, 5, v{LN_}")
    A("s_lshl_b32 s36, s35, 8")
    A("s_lshl_b32 s37, s30, 5")
    A("s_add_u32 s36, s36, s37")
    A(f"v_add_u32 v{T+4}, s36, v{T+2}")
    A(f"v_lshlrev_b32 v{T+4}, 6, v{T+4}")
    A(f"v_lshl_add_u32 v{T+4}, v{T+3}, 4, v{T+4}")
    A(f"buffer_load_dwordx4 {vr(QF, 4)}, v{T+4}, s[8:11], 0 offen")
    A(f"buffer_load_dwordx4 {vr(QF+4, 4)}, v{T+4}, s[8:11], 0 offen offset:32")
    A("s_mov_b32 s44, 0")
    A(f"s_mov_b32 s45, {ABUF}")
    A(f"s_mov_b32 s46, {2 * ABUF}")
    A("s_mov_b32 s47, 0")
    dma(44, 47)
    A("s_movk_i32 s47, 16384")
    dma(45, 47)
    A("s_mov_b32 s47, 32768")
    A(f"v_bfe_u32 v{T+4}, v{LN_}, 2, 2")
    A(f"v_xor_b32 v{T+5}, v{T+3}, v{T+4}")
    A(f"v_lshlrev_b32 v{T+5}, 4, v{T+5}")
    A(f"v_lshl_add_u32 v{B0}, v{T+2}, 6, v{T+5}")
    A(f"v_xor_b32 v{B1}, 32, v{B0}")
    for r in range(16):
        A(f"v_mov_b32 v{O+r}, 0")
    A(f"v_mov_b32 v{M}, 0")
    A(f"v_mov_b32 v{FLOOR}, 0xff7fffff")
    A(f"v_mov_b32 v{THR}, 0xff7fffff")
    A(f"v_cmp_gt_u32 s[48:49], 32, v{LN_}")
    A("s_mov_b32 s40, 0")
    A("s_waitcnt vmcnt(4)")
    A("s_barrier")
    A(f"v_mov_b32 v{AC0}, v{B0}")
    A(f"v_mov_b32 v{AC1}, v{B1}")
    A(f"v_add_u32 v{AN0}, s45, v{B0}")
    A(f"v_add_u32 v{AN1}, s45, v{B1}")
    A(f"ds_read_b128 {vr(KF, 4)}, v{AC0}")
    A(f"ds_read_b128 {vr(KF+4, 4)}, v{AC1}")
    for j in range(8):
        A(f"v_mov_b32 v{PF+j}, 0")
        A(f"v_mov_b32 v{VF+j}, 0")
    A("s_waitcnt lgkmcnt(0)")
    A(f"v_mfma_f32_32x32x16_bf16 {vr(SS[0], 16)}, {vr(KF, 4)}, {vr(QF, 4)}, 0")
    A(f"v_mfma_f32_32x32x16_bf16 {vr(SS[0], 16)}, {vr(KF+4, 4)}, {vr(QF+4, 4)}, {vr(SS[0], 16)}")
    A(f"ds_read_b128 {vr(KF, 4)}, v{AC0} offset:2048")
    A(f"ds_read_b128 {vr(KF+4, 4)}, v{AC1} offset:2048")
    A("s_nop 15")
    A.label("AT_loop")
    for tl in range(8):
        SC, SN = SS[tl & 1], SS[(tl & 1) ^ 1]
        lab = A.newlabel("AT_nors")
        if tl == 4:
            A("s_waitcnt vmcnt(0)")
            A("s_barrier")
            A("s_cmp_lt_u32 s40, 6")
            lab2 = A.newlabel("AT_nodma")
            A(f"s_cbranch_scc0 {lab2}")
            dma(46, 47)
            A("s_add_u32 s47, s47, 16384")
            A.label(lab2)
        A("s_waitcnt lgkmcnt(2)")
        A(f"v_mfma_f32_32x32x16_bf16 {vr(O, 16)}, {vr(VF, 4)}, {vr(PF, 4)}, {vr(O, 16)}")
        A(f"v_max3_f32 v{T+2}, v{SC}, v{SC+1}, v{SC+2}")
        A(f"v_max3_f32 v{T+3}, v{SC+3}, v{SC+4}, v{SC+5}")
        A(f"v_max3_f32 v{T+2}, v{T+2}, v{SC+6}, v{SC+7}")
        A(f"v_max3_f32 v{T+3}, v{T+3}, v{SC+8}, v{SC+9}")
        A(f"v_max3_f32 v{T+2}, v{T+2}, v{SC+10}, v{SC+11}")
        A(f"v_max3_f32 v{T+3}, v{T+3}, v{SC+12}, v{SC+13}")
        A(f"v_mfma_f32_32x32x16_bf16 {vr(O, 16)}, {vr(VF+4, 4)}, {vr(PF+4, 4)}, {vr(O, 16)}")
        A(f"v_max3_f32 v{T+2}, v{T+2}, v{SC+14}, v{SC+15}")
        A(f"v_max_f32 v{T+2}, v{T+2}, v{T+3}")
        A(f"v_mov_b32 v{T+3}, v{T+2}")
        A("s_nop 1")
        A(f"v_permlane32_swap_b32 v{T+2}, v{T+3}")
        A("s_nop 1")
        A(f"v_max_f32 v{T+2}, v{T+2}, v{T+3}")
        A(f"v_cmp_gt_f32 vcc, v{T+2}, v{THR}")
        A(f"s_cbranch_vccz {lab}")
        A(f"v_max_f32 v{T+2}, v{T+2}, v{FLOOR}")
        A(f"v_mov_b32 v{FLOOR}, 0")
        A(f"v_mov_b32 v{THR}, 0x41000000")
        A(f"v_add_f32 v{M}, v{M}, v{T+2}")
        A(f"v_min_f32 v{T+3}, 0, v{T+2}")
        A(f"v_sub_f32 v{T+3}, v{T+3}, v{T+2}")
        A(f"v_exp_f32 v{T+3}, v{T+3}")
        for r in range(16):
            A(f"v_sub_f32 v{SC+r}, v{SC+r}, v{T+2}")
        A(f"v_sub_f32 v{T+4}, 0, v{M}")
        A(f"v_cvt_pk_bf16_f32 v{T+5}, v{T+4}, v{T+4}")
        A(f"v_and_b32 v{T+5}, 0xffff0000, v{T+5}")
        A(f"v_sub_f32 v{T+4}, v{T+4}, v{T+5}")
        A(f"v_cvt_pk_bf16_f32 v{T+6}, v{T+4}, v{T+4}")
        A(f"v_and_b32 v{T+6}, 0xffff0000, v{T+6}")
        A(f"v_sub_f32 v{T+4}, v{T+4}, v{T+6}")
        A(f"v_cvt_pk_bf16_f32 v{T+4}, v{T+4}, v{T+4}")
        A(f"v_and_b32 v{T+4}, 0xffff, v{T+4}")
        A(f"v_lshrrev_b32 v{T+5}, 16, v{T+5}")
        A(f"v_or_b32 v{T+5}, v{T+5}, v{T+6}")
        A(f"v_cndmask_b32 v{QF+6}, 0, v{T+5}, s[48:49]")
        A(f"v_cndmask_b32 v{QF+7}, 0, v{T+4}, s[48:49]")
        A("s_nop 15")
        for r in range(12):
            A(f"v_mul_f32 v{O+r}, v{O+r}, v{T+3}")
        A.label(lab)
        A(f"ds_read_b128 {vr(VF, 4)}, v{AC0} offset:{16384 + tl * 2048}")
        A(f"ds_read_b128 {vr(VF+4, 4)}, v{AC1} offset:{16384 + tl * 2048}")
        A("s_waitcnt lgkmcnt(2)")
        A(f"v_mfma_f32_32x32x16_bf16 {vr(SN, 16)}, {vr(KF, 4)}, {vr(QF, 4)}, 0")
        for r in range(0, 6):
            if 'NOEXP' not in FL:
                A(f"v_exp_f32 v{SC+r}, v{SC+r}")
        A(f"v_mfma_f32_32x32x16_bf16 {vr(SN, 16)}, {vr(KF+4, 4)}, {vr(QF+4, 4)}, {vr(SN, 16)}")
        for r in range(6, 12):
            if 'NOEXP' not in FL:
                A(f"v_exp_f32 v{SC+r}, v{SC+r}")
        for j in range(3):
            A(f"v_cvt_pk_bf16_f32 v{PF+j}, v{SC+2*j}, v{SC+2*j+1}")
        if tl + 2 < 8:
            A(f"ds_read_b128 {vr(KF, 4)}, v{AC0} offset:{(tl + 2) * 2048}")
            A(f"ds_read_b128 {vr(KF+4, 4)}, v{AC1} offset:{(tl + 2) * 2048}")
        else:
            A(f"ds_read_b128 {vr(KF, 4)}, v{AN0} offset:{(tl - 6) * 2048}")
            A(f"ds_read_b128 {vr(KF+4, 4)}, v{AN1} offset:{(tl - 6) * 2048}")
        for r in range(12, 16):
            if 'NOEXP' not in FL:
                A(f"v_exp_f32 v{SC+r}, v{SC+r}")
        for j in range(3, 8):
            A(f"v_cvt_pk_bf16_f32 v{PF+j}, v{SC+2*j}, v{SC+2*j+1}")
        A("s_nop 0")
    A("s_mov_b32 s43, s44")
    A("s_mov_b32 s44, s45")
    A("s_mov_b32 s45, s46")
    A("s_mov_b32 s46, s43")
    A(f"v_mov_b32 v{AC0}, v{AN0}")
    A(f"v_mov_b32 v{AC1}, v{AN1}")
    A(f"v_add_u32 v{AN0}, s45, v{B0}")
    A(f"v_add_u32 v{AN1}, s45, v{B1}")
    A("s_add_u32 s40, s40, 1")
    A("s_cmp_lt_u32 s40, 8")
    A("s_cbranch_scc1 AT_loop")
    A.inloop = False
    A("s_waitcnt lgkmcnt(0)")
    A(f"v_mfma_f32_32x32x16_bf16 {vr(O, 16)}, {vr(VF, 4)}, {vr(PF, 4)}, {vr(O, 16)}")
    A(f"v_mfma_f32_32x32x16_bf16 {vr(O, 16)}, {vr(VF+4, 4)}, {vr(PF+4, 4)}, {vr(O, 16)}")
    A("s_nop 15")
    A("s_nop 3")
    A(f"v_mov_b32 v{T+2}, v{O+8}")
    A(f"v_mov_b32 v{T+3}, v{O+8}")
    A("s_nop 1")
    A(f"v_permlane32_swap_b32 v{T+2}, v{T+3}")
    A("s_nop 1")
    A(f"v_cndmask_b32 v{T+2}, v{O+8}, v{T+3}, s[48:49]")
    A(f"v_rcp_f32 v{T+2}, v{T+2}")
    A("s_nop 0")
    for r in range(12):
        A(f"v_mul_f32 v{O+r}, v{O+r}, v{T+2}")
    A(f"v_and_b32 v{T+3}, 31, v{LN_}")
    A(f"v_add_u32 v{T+3}, s36, v{T+3}")
    A(f"v_mul_u32_u24 v{T+3}, 1280, v{T+3}")
    A("s_mul_i32 s37, s34, 40")
    A(f"v_lshrrev_b32 v{T+4}, 5, v{LN_}")
    A(f"v_lshlrev_b32 v{T+4}, 3, v{T+4}")
    A(f"v_add3_u32 v{T+3}, v{T+3}, v{T+4}, s37")
    for g in range(3):
        A(f"v_cvt_pk_bf16_f32 v{T+4}, v{O+4*g}, v{O+4*g+1}")
        A(f"v_cvt_pk_bf16_f32 v{T+5}, v{O+4*g+2}, v{O+4*g+3}")
        if g == 2:
            A("s_mov_b64 exec, s[48:49]")
        A(f"buffer_store_dwordx2 {vr(T+4, 2)}, v{T+3}, s[20:23], 0 offen offset:{16 * g}")
    A.label("AT_done")
    A("s_endpgm")
    return kernel_desc(name, 104)


def main():
    A = Asm()
    hdr = open("parallel_sum__mha_block__glu_gated_geglu__prompt.s.ref").read().split("; Override")[0]
    descs = [gen_ln(A)]
    d1, lds1, n1 = gen_gemm1(A)
    descs.append(d1)
    descs.append(gen_attn(A))
    d2, lds2, n2 = gen_gemm2(A, 1, 2)
    descs.append(d2)
    out = hdr
    out += "; @launch kernel=ln_kernel grid=(512,1,1) block=(256,1,1) lds=0\n"
    out += f"; @launch kernel=gemm1_kernel grid=({n1},1,1) block=(768,1,1) lds={lds1}\n"
    out += f"; @launch kernel=attn_kernel grid=(256,1,1) block=(512,1,1) lds={LDS_ATT}\n"
    out += f"; @launch kernel=gemm2_kernel grid=({n2},1,1) block=(256,1,1) lds={lds2}\n"
    out += '.amdgcn_target "amdgcn-amd-amdhsa--gfx950"\n.text\n'
    out += "\n".join(A.lines) + "\n"
    out += "".join(descs)
    dst = sys.argv[1] if len(sys.argv) > 1 else "parallel_sum__mha_block__glu_gated_geglu__prompt.s"
    open(dst, "w").write(out)


if __name__ == "__main__":
    main()
```

```python
import os
import struct
import sys

FL = set(os.environ.get('FLAGS', '').split(','))

from gen import Asm, vr, sr, kernel_begin, kernel_desc, gen_ln

S = 2048
D = 640
H = 32
DH = 20
DF = 1728

WS_XN = 0
WS_Q = 4 << 20
WS_K = 8 << 20
WS_V = 12 << 20
WS_H = 16 << 20
WS_O = 24 << 20
HEADB = 2048 * 64

CSCALE = DH ** -0.5 * 1.4426950408889634


def fbits(x):
    return struct.unpack("<I", struct.pack("<f", x))[0]


NST = 4


STAMPN = [0]


def stamp(A):
    n = STAMPN[0]
    if n < 15:
        A(f"s_memtime s[{60 + 2 * n}:{61 + 2 * n}]")
    STAMPN[0] += 1


class Gemm:
    def __init__(self, TM, TN, WM=2, WN=2):
        self.TM, self.TN, self.WM, self.WN = TM, TN, WM, WN
        self.BM, self.BN = 32 * TM * WM, 32 * TN * WN
        self.RS = self.BN * 2
        self.XB = self.BM * 64
        self.WB = self.BN * 64
        self.STAGE = self.XB + self.WB
        self.LDS = NST * self.STAGE
        self.nx = self.BM // 16 // 4
        self.nwi = self.BN // 16
        self.nw = (self.nwi + 3) // 4
        self.mode = {64: 'x1', 128: 'x2', 160: 'lin'}[self.BN]
        self.naw = 2 if self.mode == 'x2' else 1
        self.ACC = 0
        n = TM * TN * 16
        self.FX = n
        self.FW = self.FX + 8 * TM
        self.AX = self.FW + 8 * TN
        self.AW = self.AX + 2
        self.GX = self.AW + 2
        self.GW = self.GX + 2 * self.nx
        self.TID = self.GW + 2 * self.nw
        self.T = self.TID + 1
        if self.T & 1:
            self.T += 1
        self.NV = self.T + 24

    def acc(self, ti, ci):
        return self.ACC + (ti * self.TN + ci) * 16

    def setup(self, A):
        T = self.T
        A(f"v_mov_b32 v{self.TID}, v0")
        A(f"v_and_b32 v{T}, 63, v0")
        A(f"v_lshrrev_b32 v{T+1}, 6, v0")
        A("s_nop 0")
        A(f"v_readfirstlane_b32 s30, v{T+1}")
        A("s_nop 3")
        if self.WN == 2:
            A("s_lshr_b32 s31, s30, 1")
            A("s_and_b32 s32, s30, 1")
        else:
            A("s_mov_b32 s31, s30")
            A("s_mov_b32 s32, 0")
        A(f"v_and_b32 v{T+2}, 31, v{T}")
        A(f"s_mul_i32 s33, s31, {32 * self.TM}")
        A(f"v_add_u32 v{T+2}, s33, v{T+2}")
        A(f"v_lshrrev_b32 v{T+3}, 5, v{T}")
        A(f"v_bfe_u32 v{T+4}, v{T}, 2, 2")
        A(f"v_xor_b32 v{T+3}, v{T+3}, v{T+4}")
        A(f"v_lshlrev_b32 v{T+3}, 4, v{T+3}")
        A(f"v_lshl_add_u32 v{self.AX}, v{T+2}, 6, v{T+3}")
        A(f"v_xor_b32 v{self.AX+1}, 32, v{self.AX}")
        RS = self.RS
        A(f"v_lshrrev_b32 v{T+2}, 5, v{T}")
        A(f"v_lshlrev_b32 v{T+2}, 3, v{T+2}")
        A(f"v_bfe_u32 v{T+3}, v{T}, 2, 2")
        A(f"v_add_u32 v{T+2}, v{T+2}, v{T+3}")
        A(f"v_mul_u32_u24 v{T+2}, {RS}, v{T+2}")
        if self.mode == 'x2':
            A("s_lshl_b32 s33, s32, 1")
            A(f"v_xor_b32 v{T+3}, s33, v{T+3}")
            A(f"v_lshl_add_u32 v{T+2}, v{T+3}, 6, v{T+2}")
        elif self.mode == 'x1':
            A(f"v_lshrrev_b32 v{T+3}, 1, v{T+3}")
            A(f"v_xor_b32 v{T+3}, s32, v{T+3}")
            A(f"v_lshl_add_u32 v{T+2}, v{T+3}, 6, v{T+2}")
        A(f"v_bfe_u32 v{T+3}, v{T}, 4, 1")
        A(f"v_lshl_add_u32 v{T+2}, v{T+3}, 5, v{T+2}")
        A(f"v_and_b32 v{T+3}, 3, v{T}")
        A(f"v_lshl_add_u32 v{T+2}, v{T+3}, 3, v{T+2}")
        A(f"v_add_u32 v{self.AW}, {self.XB}, v{T+2}")
        if self.mode == 'x2':
            A(f"v_xor_b32 v{self.AW+1}, 64, v{self.AW}")
        A(f"s_mul_i32 s28, s30, {self.nx * 1024}")
        for j in range(self.nw):
            if self.mode == 'lin':
                A(f"s_add_u32 s{24+j}, s30, {4 * j}")
                A(f"s_min_u32 s{24+j}, s{24+j}, {self.nwi - 1}")
            else:
                A(f"s_mul_i32 s{24+j}, s30, {self.nw}")
                A(f"s_add_u32 s{24+j}, s{24+j}, {j}")

    def xaddr(self, A, base_s, xstride, tok0_s):
        T = self.T
        A(f"v_lshrrev_b32 v{T+2}, 2, v{T}")
        A(f"s_mul_i32 s33, s30, {16 * self.nx}")
        A(f"s_add_u32 s33, s33, s{tok0_s}")
        A(f"v_add_u32 v{T+2}, s33, v{T+2}")
        A(f"s_mov_b32 s33, {xstride}")
        A(f"v_mul_lo_u32 v{T+2}, v{T+2}, s33")
        A(f"v_and_b32 v{T+3}, 3, v{T}")
        A(f"v_bfe_u32 v{T+4}, v{T}, 4, 2")
        A(f"v_xor_b32 v{T+3}, v{T+3}, v{T+4}")
        A(f"v_lshl_add_u32 v{T+2}, v{T+3}, 4, v{T+2}")
        for j in range(self.nx):
            if j:
                A(f"v_add_u32 v{T+2}, {16 * xstride}, v{T+2}")
            A(f"v_mov_b32 v{self.GX+2*j+1}, s{base_s+1}")
            A(f"v_add_co_u32 v{self.GX+2*j}, vcc, s{base_s}, v{T+2}")
            A("s_nop 1")
            A(f"v_addc_co_u32 v{self.GX+2*j+1}, vcc, 0, v{self.GX+2*j+1}, vcc")

    def wlane(self, A, j):
        T = self.T
        if self.mode == 'x2':
            A(f"v_lshrrev_b32 v{T+2}, 4, v{T}")
            A(f"v_bfe_u32 v{T+3}, v{T}, 2, 2")
            A(f"v_xor_b32 v{T+3}, v{T+3}, v{T+2}")
            A(f"s_lshl_b32 s33, s{24+j}, 2")
            A(f"v_add_u32 v{T+2}, s33, v{T+2}")
            A(f"v_and_b32 v{T+4}, 3, v{T}")
        elif self.mode == 'x1':
            A(f"v_lshrrev_b32 v{T+2}, 3, v{T}")
            A(f"v_bfe_u32 v{T+3}, v{T}, 2, 1")
            A(f"v_bfe_u32 v{T+4}, v{T}, 4, 1")
            A(f"v_xor_b32 v{T+3}, v{T+3}, v{T+4}")
            A(f"s_lshl_b32 s33, s{24+j}, 3")
            A(f"v_add_u32 v{T+2}, s33, v{T+2}")
            A(f"v_and_b32 v{T+4}, 3, v{T}")
        else:
            A(f"s_lshl_b32 s33, s{24+j}, 6")
            A(f"v_add_u32 v{T+5}, s33, v{T}")
            A("s_movk_i32 s33, 3277")
            A(f"v_mul_lo_u32 v{T+2}, v{T+5}, s33")
            A(f"v_lshrrev_b32 v{T+2}, 16, v{T+2}")
            A(f"v_mul_u32_u24 v{T+3}, 20, v{T+2}")
            A(f"v_sub_u32 v{T+5}, v{T+5}, v{T+3}")
            A(f"v_lshrrev_b32 v{T+3}, 2, v{T+5}")
            A(f"v_and_b32 v{T+4}, 3, v{T+5}")

    def waddr_plain(self, A, base_s, wstride, col0b_s):
        T = self.T
        for j in range(self.nw):
            self.wlane(A, j)
            A(f"s_mov_b32 s33, {wstride}")
            A(f"v_mul_lo_u32 v{T+2}, v{T+2}, s33")
            A(f"v_lshl_add_u32 v{T+2}, v{T+3}, 6, v{T+2}")
            A(f"v_lshl_add_u32 v{T+2}, v{T+4}, 4, v{T+2}")
            A(f"v_add_u32 v{T+2}, s{col0b_s}, v{T+2}")
            A(f"v_mov_b32 v{self.GW+2*j+1}, s{base_s+1}")
            A(f"v_add_co_u32 v{self.GW+2*j}, vcc, s{base_s}, v{T+2}")
            A("s_nop 1")
            A(f"v_addc_co_u32 v{self.GW+2*j+1}, vcc, 0, v{self.GW+2*j+1}, vcc")

    def fin_setup(self, A):
        for j in range(self.nw):
            A(f"s_lshl_b32 s{24+j}, s{24+j}, 10")
            A(f"s_add_u32 s{24+j}, s{24+j}, {self.XB}")

    def issue(self, A, st):
        for j in range(self.nx):
            A(f"s_add_u32 m0, s28, {st * self.STAGE + j * 1024}")
            A("s_nop 0")
            A(f"global_load_lds_dwordx4 {vr(self.GX+2*j, 2)}, off")
            A(f"v_lshl_add_u64 {vr(self.GX+2*j, 2)}, {vr(self.GX+2*j, 2)}, 0, s[40:41]")
        for j in range(self.nw):
            A(f"s_add_u32 m0, s{24+j}, {st * self.STAGE}")
            A("s_nop 0")
            A(f"global_load_lds_dwordx4 {vr(self.GW+2*j, 2)}, off")
            A(f"v_lshl_add_u64 {vr(self.GW+2*j, 2)}, {vr(self.GW+2*j, 2)}, 0, s[42:43]")

    def read_frags(self, A, st, ks, fs):
        RS = self.RS
        for ti in range(self.TM):
            A(f"ds_read_b128 {vr(self.FX + fs * 4 * self.TM + ti * 4, 4)}, v{self.AX+ks} offset:{st * self.STAGE + ti * 2048}")
        for ci in range(self.TN):
            for t in range(2):
                if self.mode == 'x2':
                    A(f"ds_read_b64_tr_b16 {vr(self.FW + fs * 4 * self.TN + ci * 4 + 2 * t, 2)}, v{self.AW+ci} offset:{st * self.STAGE + (ks * 16 + 4 * t) * RS}")
                else:
                    A(f"ds_read_b64_tr_b16 {vr(self.FW + fs * 4 * self.TN + ci * 4 + 2 * t, 2)}, v{self.AW} offset:{st * self.STAGE + (ks * 16 + 4 * t) * RS + ci * 64}")

    def mfmas(self, A, fs, swapped):
        for ti in range(self.TM):
            for ci in range(self.TN):
                acc = vr(self.acc(ti, ci), 16)
                fx = vr(self.FX + fs * 4 * self.TM + ti * 4, 4)
                fw = vr(self.FW + fs * 4 * self.TN + ci * 4, 4)
                if swapped:
                    A(f"v_mfma_f32_32x32x16_bf16 {acc}, {fw}, {fx}, {acc}")
                else:
                    A(f"v_mfma_f32_32x32x16_bf16 {acc}, {fx}, {fw}, {acc}")

    def mainloop(self, A, nkt, swapped, hook=None):
        npw = self.nx + self.nw
        nrd = self.TM + 2 * self.TN
        for r in range(self.TM * self.TN * 16):
            A(f"v_mov_b32 v{self.ACC + r}, 0")
        for kt in range(min(3, nkt)):
            if hook:
                hook(A, kt)
            self.issue(A, kt % NST)
        for kt in range(nkt):
            st = kt % NST
            if 'STAMP' in FL and kt in (0, 1, 2, 3, 6, 10, 14, 19):
                stamp(A)
            inflight = min(nkt, kt + 3) - kt - 1
            A(f"s_waitcnt vmcnt({inflight * npw})")
            A("s_barrier")
            self.read_frags(A, st, 0, 0)
            self.read_frags(A, st, 1, 1)
            if kt + 3 < nkt:
                if hook:
                    hook(A, kt + 3)
                self.issue(A, (kt + 3) % NST)
            A(f"s_waitcnt lgkmcnt({min(nrd, 15)})")
            self.mfmas(A, 0, swapped)
            A("s_waitcnt lgkmcnt(0)")
            self.mfmas(A, 1, swapped)
        if 'STAMP' in FL:
            stamp(A)
        A("s_barrier")
        A("s_nop 15")


class GemmB:
    def __init__(self, kind):
        self.kind = kind
        if kind == 'qkv':
            self.TM, self.TN, self.BN = 1, 5, 160
        else:
            self.TM, self.TN, self.BN = 2, 2, 192
        self.RS = self.BN * 2
        self.XB = 256 * 64
        self.WB = self.BN * 64
        self.STAGE = self.XB + self.WB
        self.nwi = self.BN // 16
        self.cpr = self.RS // 16
        self.ACC = 0
        n = self.TM * self.TN * 16
        self.FX = n
        self.FW = self.FX + 8 * self.TM
        self.AX = self.FW + 8 * self.TN
        self.AW = self.AX + 2
        self.GA = self.AW + 2
        self.TID = self.GA + 6
        self.ONES = self.TID + 1
        self.SX = self.TID + 2
        self.SQ = self.SX + self.TM
        self.CS = self.SQ + self.TM
        self.T = self.CS + self.TN
        self.T += self.T & 1
        self.NV = self.T + 20

    def acc(self, ti, ci):
        return self.ACC + (ti * self.TN + ci) * 16

    def stats_init(self, A):
        A(f"v_mov_b32 v{self.ONES}, 0x3f803f80")
        for r in range(self.SX, self.CS + self.TN):
            A(f"v_mov_b32 v{r}, 0")

    def stats_fin(self, A):
        T = self.T
        self.stats_reduce(A)
        A("s_mov_b32 s33, 0x3acccccd")
        for i in range(self.TM):
            m, q = self.SX + i, self.SQ + i
            A(f"v_mul_f32 v{m}, s33, v{m}")
            A(f"v_mul_f32 v{q}, s33, v{q}")
            A(f"v_fma_f32 v{q}, -v{m}, v{m}, v{q}")
            A(f"v_max_f32 v{q}, 0, v{q}")
            A(f"v_cvt_pk_bf16_f32 v{m}, v{m}, v{m}")
            A(f"v_lshlrev_b32 v{m}, 16, v{m}")
            A(f"v_cvt_pk_bf16_f32 v{q}, v{q}, v{q}")
            A(f"v_lshlrev_b32 v{q}, 16, v{q}")
            A(f"v_add_f32 v{q}, 0x3727c5ac, v{q}")
            A(f"v_cvt_pk_bf16_f32 v{q}, v{q}, v{q}")
            A(f"v_lshlrev_b32 v{q}, 16, v{q}")
            A(f"v_sqrt_f32 v{q}, v{q}")
            A("s_nop 0")
            A(f"v_cvt_pk_bf16_f32 v{q}, v{q}, v{q}")
            A(f"v_lshlrev_b32 v{q}, 16, v{q}")
            A(f"v_rcp_f32 v{q}, v{q}")
            A("s_nop 0")

    def cs_exchange(self, A, dst):
        T = self.T
        A("s_lshl_b32 s33, s30, 11")
        A("s_add_u32 s33, s33, 0x20500")
        A(f"v_and_b32 v{T+2}, 31, v{T}")
        A(f"v_lshlrev_b32 v{T+2}, 2, v{T+2}")
        A(f"v_add_u32 v{T+2}, s33, v{T+2}")
        for ci in range(self.TN):
            A(f"ds_write_b32 v{T+2}, v{self.CS+ci} offset:{ci * 128}")
        A(f"v_lshrrev_b32 v{T+3}, 5, v{T}")
        A(f"v_lshlrev_b32 v{T+3}, 4, v{T+3}")
        A(f"v_add_u32 v{T+3}, s33, v{T+3}")
        A("s_waitcnt lgkmcnt(0)")
        for ci in range(self.TN):
            for q4 in range(4):
                A(f"ds_read_b128 {vr(dst + ci * 16 + 4 * q4, 4)}, v{T+3} offset:{ci * 128 + q4 * 32}")
        A("s_waitcnt lgkmcnt(0)")

    def xaddr_one(self, A, dst, idx_s):
        T = self.T
        A(f"s_lshl_b32 s33, s{idx_s}, 4")
        A("s_add_u32 s33, s33, s36")
        A(f"v_lshrrev_b32 v{T+2}, 2, v{T}")
        A(f"v_add_u32 v{T+2}, s33, v{T+2}")
        A(f"v_mul_u32_u24 v{T+2}, 1280, v{T+2}")
        A(f"v_and_b32 v{T+3}, 3, v{T}")
        A(f"v_bfe_u32 v{T+4}, v{T}, 4, 2")
        A(f"v_xor_b32 v{T+3}, v{T+3}, v{T+4}")
        A(f"v_lshl_add_u32 v{T+2}, v{T+3}, 4, v{T+2}")
        A(f"v_mov_b32 v{dst+1}, s13")
        A(f"v_add_co_u32 v{dst}, vcc, s12, v{T+2}")
        A("s_nop 1")
        A(f"v_addc_co_u32 v{dst+1}, vcc, 0, v{dst+1}, vcc")

    def waddr_one(self, A, dst, idx_s):
        T = self.T
        A(f"s_lshl_b32 s33, s{idx_s}, 6")
        A(f"v_add_u32 v{T+5}, s33, v{T}")
        if self.kind == 'qkv':
            A("s_movk_i32 s33, 3277")
            A(f"v_mul_lo_u32 v{T+2}, v{T+5}, s33")
            A(f"v_lshrrev_b32 v{T+2}, 16, v{T+2}")
            A(f"v_mul_u32_u24 v{T+3}, 20, v{T+2}")
            A(f"v_sub_u32 v{T+5}, v{T+5}, v{T+3}")
            A(f"v_mul_u32_u24 v{T+2}, 3840, v{T+2}")
            A(f"v_lshl_add_u32 v{T+2}, v{T+5}, 4, v{T+2}")
            A(f"v_add_u32 v{T+2}, s37, v{T+2}")
            A(f"v_mov_b32 v{dst+1}, s5")
            A(f"v_add_co_u32 v{dst}, vcc, s4, v{T+2}")
            A("s_nop 1")
            A(f"v_addc_co_u32 v{dst+1}, vcc, 0, v{dst+1}, vcc")
        else:
            A("s_movk_i32 s33, 2731")
            A(f"v_mul_lo_u32 v{T+2}, v{T+5}, s33")
            A(f"v_lshrrev_b32 v{T+2}, 16, v{T+2}")
            A(f"v_mul_u32_u24 v{T+3}, 24, v{T+2}")
            A(f"v_sub_u32 v{T+5}, v{T+5}, v{T+3}")
            A(f"v_lshrrev_b32 v{T+3}, 2, v{T+5}")
            A(f"v_bfe_u32 v{T+4}, v{T+2}, 1, 1")
            A(f"v_xor_b32 v{T+3}, v{T+3}, v{T+4}")
            A(f"v_and_b32 v{T+5}, 3, v{T+5}")
            A(f"v_mul_u32_u24 v{T+2}, {DF * 2}, v{T+2}")
            A(f"v_lshl_add_u32 v{T+2}, v{T+5}, 4, v{T+2}")
            A(f"v_lshrrev_b32 v{T+4}, 1, v{T+3}")
            A(f"v_lshl_add_u32 v{T+2}, v{T+4}, 6, v{T+2}")
            A(f"v_add_u32 v{T+2}, s37, v{T+2}")
            A(f"v_and_b32 v{T+3}, 1, v{T+3}")
            A(f"v_cmp_eq_u32 vcc, 1, v{T+3}")
            A(f"v_mov_b32 v{T+4}, s8")
            A(f"v_mov_b32 v{T+5}, s9")
            A(f"v_mov_b32 v{T+6}, s10")
            A(f"v_mov_b32 v{T+7}, s11")
            A(f"v_cndmask_b32 v{T+4}, v{T+4}, v{T+6}, vcc")
            A(f"v_cndmask_b32 v{T+5}, v{T+5}, v{T+7}, vcc")
            A(f"v_add_co_u32 v{dst}, vcc, v{T+4}, v{T+2}")
            A("s_nop 1")
            A(f"v_addc_co_u32 v{dst+1}, vcc, 0, v{T+5}, vcc")

    def setup(self, A, wadv):
        T = self.T
        lab = A.newlabel("G1_x1")
        lab2 = A.newlabel("G1_x2")
        A(f"v_mov_b32 v{self.TID}, v0")
        A(f"v_and_b32 v{T}, 63, v0")
        A(f"v_lshrrev_b32 v{T+1}, 6, v0")
        A("s_nop 0")
        A(f"v_readfirstlane_b32 s30, v{T+1}")
        A("s_waitcnt lgkmcnt(0)")
        self.xaddr_one(A, self.GA, 30)
        A("s_lshl_b32 s24, s30, 10")
        A("s_mov_b32 s40, 64")
        A("s_mov_b32 s41, 0")
        A(f"s_mov_b32 s44, {wadv}")
        A("s_mov_b32 s45, 0")
        A("s_cmp_lt_u32 s30, 4")
        A(f"s_cbranch_scc0 {lab}")
        A("s_add_u32 s25, s30, 12")
        self.xaddr_one(A, self.GA + 2, 25)
        A("s_lshl_b32 s25, s25, 10")
        A("s_mov_b32 s42, 64")
        A(f"s_branch {lab2}")
        A.label(lab)
        A("s_sub_u32 s25, s30, 4")
        self.waddr_one(A, self.GA + 2, 25)
        A("s_lshl_b32 s25, s25, 10")
        A(f"s_add_u32 s25, s25, {self.XB}")
        A(f"s_mov_b32 s42, {wadv}")
        A.label(lab2)
        A("s_mov_b32 s43, 0")
        A("s_add_u32 s26, s30, 8")
        A(f"s_min_u32 s26, s26, {self.nwi - 1}")
        self.waddr_one(A, self.GA + 4, 26)
        A("s_lshl_b32 s26, s26, 10")
        A(f"s_add_u32 s26, s26, {self.XB}")

    def issue(self, A, st):
        for j in range(3):
            A(f"s_add_u32 m0, s{24+j}, {st * self.STAGE}")
            A("s_nop 0")
            A(f"global_load_lds_dwordx4 {vr(self.GA+2*j, 2)}, off")
            A(f"v_lshl_add_u64 {vr(self.GA+2*j, 2)}, {vr(self.GA+2*j, 2)}, 0, s[{40+2*j}:{41+2*j}]")

    def frag_setup(self, A):
        T = self.T
        if self.kind == 'qkv':
            A("s_and_b32 s31, s30, 7")
            A("s_mov_b32 s32, 0")
        else:
            A("s_and_b32 s31, s30, 3")
            A("s_lshr_b32 s32, s30, 2")
        A(f"v_and_b32 v{T+2}, 31, v{T}")
        A(f"s_mul_i32 s33, s31, {32 * self.TM}")
        A(f"v_add_u32 v{T+2}, s33, v{T+2}")
        A(f"v_lshrrev_b32 v{T+3}, 5, v{T}")
        A(f"v_bfe_u32 v{T+4}, v{T}, 2, 2")
        A(f"v_xor_b32 v{T+3}, v{T+3}, v{T+4}")
        A(f"v_lshlrev_b32 v{T+3}, 4, v{T+3}")
        A(f"v_lshl_add_u32 v{self.AX}, v{T+2}, 6, v{T+3}")
        A(f"v_xor_b32 v{self.AX+1}, 32, v{self.AX}")
        A(f"v_lshrrev_b32 v{T+2}, 5, v{T}")
        A(f"v_lshlrev_b32 v{T+2}, 3, v{T+2}")
        A(f"v_bfe_u32 v{T+3}, v{T}, 2, 2")
        A(f"v_add_u32 v{T+2}, v{T+2}, v{T+3}")
        A(f"v_mul_u32_u24 v{T+2}, {self.RS}, v{T+2}")
        if self.kind == 'glu':
            A(f"v_lshrrev_b32 v{T+3}, 1, v{T+3}")
            A("s_lshl_b32 s33, s32, 1")
            A(f"v_xor_b32 v{T+3}, s33, v{T+3}")
            A(f"v_lshl_add_u32 v{T+2}, v{T+3}, 6, v{T+2}")
        A(f"v_bfe_u32 v{T+3}, v{T}, 4, 1")
        A(f"v_lshl_add_u32 v{T+2}, v{T+3}, 5, v{T+2}")
        A(f"v_and_b32 v{T+3}, 3, v{T}")
        A(f"v_lshl_add_u32 v{T+2}, v{T+3}, 3, v{T+2}")
        A(f"v_add_u32 v{self.AW}, {self.XB}, v{T+2}")
        if self.kind == 'glu':
            A(f"v_xor_b32 v{self.AW+1}, 64, v{self.AW}")

    def read_frags(self, A, st, ks, fs):
        RS = self.RS
        for ti in range(self.TM):
            A(f"ds_read_b128 {vr(self.FX + fs * 4 * self.TM + ti * 4, 4)}, v{self.AX+ks} offset:{st * self.STAGE + ti * 2048}")
        for ci in range(self.TN):
            for t in range(2):
                if self.kind == 'glu':
                    A(f"ds_read_b64_tr_b16 {vr(self.FW + fs * 4 * self.TN + ci * 4 + 2 * t, 2)}, v{self.AW+ci} offset:{st * self.STAGE + (ks * 16 + 4 * t) * RS}")
                else:
                    A(f"ds_read_b64_tr_b16 {vr(self.FW + fs * 4 * self.TN + ci * 4 + 2 * t, 2)}, v{self.AW} offset:{st * self.STAGE + (ks * 16 + 4 * t) * RS + ci * 64}")

    def mfmas(self, A, fs, swapped, kstep=0):
        for ti in range(self.TM):
            for ci in range(self.TN):
                acc = vr(self.acc(ti, ci), 16)
                fx = vr(self.FX + fs * 4 * self.TM + ti * 4, 4)
                fw = vr(self.FW + fs * 4 * self.TN + ci * 4, 4)
                if swapped:
                    A(f"v_mfma_f32_32x32x16_bf16 {acc}, {fw}, {fx}, {acc}")
                else:
                    A(f"v_mfma_f32_32x32x16_bf16 {acc}, {fx}, {fw}, {acc}")
        xmod, wmod = (1, 8) if self.kind == 'qkv' else (3, 4)
        lab = None
        if xmod > 1:
            lab = A.newlabel("G1_sx")
            A(f"s_cmp_lg_u32 s32, {kstep % xmod}")
            A(f"s_cbranch_scc1 {lab}")
        for ti in range(self.TM):
            for j in range(4):
                f = self.FX + fs * 4 * self.TM + ti * 4 + j
                A(f"v_dot2_f32_bf16 v{self.SX+ti}, v{f}, v{self.ONES}, v{self.SX+ti}")
                A(f"v_dot2_f32_bf16 v{self.SQ+ti}, v{f}, v{f}, v{self.SQ+ti}")
        if lab:
            A.label(lab)
        lab = A.newlabel("G1_sw")
        A(f"s_cmp_lg_u32 s31, {kstep % wmod}")
        A(f"s_cbranch_scc1 {lab}")
        for ci in range(self.TN):
            for j in range(4):
                f = self.FW + fs * 4 * self.TN + ci * 4 + j
                A(f"v_dot2_f32_bf16 v{self.CS+ci}, v{f}, v{self.ONES}, v{self.CS+ci}")
        A.label(lab)

    def stats_reduce(self, A):
        T = self.T
        for r in range(self.SX, self.CS + self.TN):
            A(f"v_mov_b32 v{T+2}, v{r}")
            A("s_nop 1")
            A(f"v_permlane32_swap_b32 v{T+2}, v{r}")
            A("s_nop 1")
            A(f"v_add_f32 v{r}, v{r}, v{T+2}")
        A(f"v_and_b32 v{T+2}, 31, v{T}")
        A(f"v_lshlrev_b32 v{T+2}, 2, v{T+2}")
        A(f"v_add_u32 v{T+2}, 0x20000, v{T+2}")
        A("s_lshl_b32 s33, s30, 11")
        A(f"v_add_u32 v{T+3}, s33, v{T+2}")
        nst = 2 * self.TM + self.TN
        for i in range(nst):
            A(f"ds_write_b32 v{T+3}, v{self.SX+i} offset:{i * 128}")
        A("s_waitcnt lgkmcnt(0)")
        A("s_barrier")
        if self.kind == 'glu':
            A("s_lshl_b32 s33, s31, 11")
            A(f"v_add_u32 v{T+3}, s33, v{T+2}")
            A("s_lshl_b32 s33, s32, 13")
            A(f"v_add_u32 v{T+4}, s33, v{T+2}")
            n = 0
            for i in range(4):
                for j in range(3):
                    A(f"ds_read_b32 v{self.FX + n}, v{T+3} offset:{j * 8192 + i * 128}")
                    n += 1
            for i in range(2):
                for j in range(4):
                    A(f"ds_read_b32 v{self.FX + n}, v{T+4} offset:{j * 2048 + (4 + i) * 128}")
                    n += 1
            A("s_waitcnt lgkmcnt(0)")
            for i in range(4):
                A(f"v_add_f32 v{self.SX+i}, v{self.FX+3*i}, v{self.FX+3*i+1}")
                A(f"v_add_f32 v{self.SX+i}, v{self.SX+i}, v{self.FX+3*i+2}")
            for i in range(2):
                b = self.FX + 12 + 4 * i
                A(f"v_add_f32 v{self.CS+i}, v{b}, v{b+1}")
                A(f"v_add_f32 v{b+2}, v{b+2}, v{b+3}")
                A(f"v_add_f32 v{self.CS+i}, v{self.CS+i}, v{b+2}")
        else:
            for i in range(5):
                for j in range(8):
                    A(f"ds_read_b32 v{self.FX + 8 * i + j}, v{T+2} offset:{j * 2048 + (2 + i) * 128}")
            A("s_waitcnt lgkmcnt(0)")
            for i in range(5):
                b = self.FX + 8 * i
                A(f"v_add_f32 v{self.CS+i}, v{b}, v{b+1}")
                for j in range(2, 8):
                    A(f"v_add_f32 v{self.CS+i}, v{self.CS+i}, v{b+j}")

    def mainloop(self, A, swapped, compute=True):
        nkt = 20
        nrd = self.TM + 2 * self.TN
        assert 3 * self.STAGE + self.XB + 20 * self.RS + 64 * 5 < 65536 + self.XB + 65536
        for kt in range(nkt):
            st = kt % NST
            inflight = min(nkt, kt + 3) - kt - 1
            A(f"s_waitcnt vmcnt({inflight * 3})")
            A("s_barrier")
            if compute:
                self.read_frags_big(A, st, 0, 0)
                self.read_frags_big(A, st, 1, 1)
            if kt + 3 < nkt:
                self.issue(A, (kt + 3) % NST)
            if compute:
                A(f"s_waitcnt lgkmcnt({min(nrd, 15)})")
                self.mfmas(A, 0, swapped, 2 * kt)
                A("s_waitcnt lgkmcnt(0)")
                self.mfmas(A, 1, swapped, 2 * kt + 1)
        A("s_barrier")
        A("s_nop 15")

    def read_frags_big(self, A, st, ks, fs):
        if st < 2:
            self.read_frags(A, st, ks, fs)
            return
        sv = (self.AX, self.AW)
        T = self.T
        self.AX, self.AW = T + 16, T + 18
        self.read_frags(A, st - 2, ks, fs)
        self.AX, self.AW = sv

    def big_setup(self, A):
        T = self.T
        for i in range(2):
            A(f"v_add_u32 v{T+16+i}, {2 * self.STAGE}, v{self.AX+i}")
            A(f"v_add_u32 v{T+18+i}, {2 * self.STAGE}, v{self.AW+i}")


def gen_gemm1(A):
    name = "gemm1_kernel"
    NWG = 240
    kernel_begin(A, name)
    A(f"s_cmp_ge_u32 s2, {NWG}")
    A("s_cbranch_scc1 G1_done")
    A("s_load_dwordx2 s[4:5], s[0:1], 8")
    A("s_load_dwordx4 s[8:11], s[0:1], 32")
    A("s_load_dwordx2 s[6:7], s[0:1], 72")
    A("s_load_dwordx2 s[12:13], s[0:1], 0")
    A("s_and_b32 s34, s2, 7")
    A("s_mul_i32 s34, s34, 30")
    A("s_lshr_b32 s35, s2, 3")
    A("s_add_u32 s35, s35, s34")
    A("s_and_b32 s34, s35, 7")
    A("s_lshr_b32 s35, s35, 3")
    A("s_lshl_b32 s36, s34, 8")
    A("s_cmp_ge_u32 s35, 12")
    A("s_cbranch_scc1 G1_glu")
    G = GemmB('qkv')
    T = G.T
    A("s_mul_i32 s37, s35, 320")
    G.setup(A, 32 * 3840)
    for st in range(3):
        G.issue(A, st)
    G.frag_setup(A)
    G.big_setup(A)
    for r in range(80):
        A(f"v_mov_b32 v{r}, 0")
    G.stats_init(A)
    A("s_cmp_ge_u32 s30, 8")
    A("s_cbranch_scc1 G1_helper")
    A("s_cmp_ge_u32 s35, 8")
    A("s_cbranch_scc1 G1_v")
    G.mainloop(A, True)
    A("s_cmp_ge_u32 s35, 4")
    A(f"s_mov_b32 s38, {WS_Q}")
    A(f"s_cselect_b32 s38, {WS_K}, s38")
    A(f"s_mov_b32 s39, 0x{fbits(CSCALE):08x}")
    A(f"s_cselect_b32 s39, 1.0, s39")
    A("s_cselect_b32 s48, 3, 0")
    A("s_cselect_b32 s49, 0x3f803f80, 0")
    A("s_cselect_b32 s50, 0x3f80, 0")
    G.stats_fin(A)
    A(f"v_mul_f32 v{G.SQ}, s39, v{G.SQ}")
    A("s_lshl_b32 s33, s30, 11")
    A("s_add_u32 s33, s33, 0x20500")
    A(f"v_and_b32 v{T+2}, 31, v{T}")
    A(f"v_lshlrev_b32 v{T+2}, 2, v{T+2}")
    A(f"v_add_u32 v{T+2}, s33, v{T+2}")
    for ci in range(5):
        A(f"ds_write_b32 v{T+2}, v{G.CS+ci} offset:{ci * 128}")
    A(f"v_lshrrev_b32 v{T+3}, 5, v{T}")
    A(f"v_lshlrev_b32 v{T+3}, 4, v{T+3}")
    A(f"v_add_u32 v{T+3}, s33, v{T+3}")
    A("s_waitcnt lgkmcnt(0)")
    for cis in ((0, 1, 2), (3, 4)):
        for n_, ci in enumerate(cis):
            for q4 in range(4):
                A(f"ds_read_b128 {vr(G.FX + n_ * 16 + 4 * q4, 4)}, v{T+3} offset:{ci * 128 + q4 * 32}")
        A("s_waitcnt lgkmcnt(0)")
        for n_, ci in enumerate(cis):
            for r in range(16):
                a = G.acc(0, ci) + r
                A(f"v_fma_f32 v{a}, -v{G.SX}, v{G.FX + n_ * 16 + r}, v{a}")
                A(f"v_mul_f32 v{a}, v{G.SQ}, v{a}")
    A(f"v_and_b32 v{T+2}, 31, v{T}")
    A("s_lshl_b32 s37, s30, 5")
    A(f"v_add_u32 v{T+2}, s37, v{T+2}")
    A(f"v_bfe_u32 v{T+3}, v{T+2}, 2, 2")
    A(f"v_and_b32 v{T+3}, s48, v{T+3}")
    A(f"v_lshlrev_b32 v{T+2}, 6, v{T+2}")
    for c in range(4):
        A(f"v_xor_b32 v{T+4}, {c}, v{T+3}")
        A(f"v_lshl_add_u32 v{G.FX+c}, v{T+4}, 4, v{T+2}")
        A(f"v_add_u32 v{G.FX+4+c}, 0x10000, v{G.FX+c}")
    A(f"v_mov_b32 v{T+8}, s49")
    A(f"v_mov_b32 v{T+9}, s50")
    for r in range(4):
        A(f"v_mov_b32 v{T+12+r}, 0")
    A("s_mov_b64 s[52:53], exec")
    A("s_mov_b32 s54, -1")
    A("s_mov_b32 s55, 0")
    A("s_mov_b32 s56, 0")
    A("s_mov_b32 s57, -1")
    for ci in range(5):
        for q4 in range(4):
            a = G.acc(0, ci) + 4 * q4
            A(f"v_cvt_pk_bf16_f32 v{T+6}, v{a}, v{a+1}")
            A(f"v_cvt_pk_bf16_f32 v{T+7}, v{a+2}, v{a+3}")
            for hh in range(2):
                col = ci * 32 + 8 * q4 + 4 * hh
                head, d = col // 20, col % 20
                hb = G.FX + (4 if head >= 4 else 0)
                ho = (head & 3) * 16384
                A(f"s_mov_b64 exec, s[{54 + 2 * hh}:{55 + 2 * hh}]")
                if d == 16:
                    A(f"ds_write_b128 v{hb+2}, {vr(T+6, 4)} offset:{ho}")
                    A(f"ds_write_b128 v{hb+3}, {vr(T+12, 4)} offset:{ho}")
                else:
                    A(f"ds_write_b64 v{hb+(d >> 3)}, {vr(T+6, 2)} offset:{ho + ((d >> 2) & 1) * 8}")
            A("s_mov_b64 exec, s[52:53]")
    A("s_branch G1_copyout")
    A.label("G1_helper")
    G.mainloop(A, True, compute=False)
    A("s_barrier")
    A("s_barrier")
    A("s_branch G1_done")
    A.label("G1_v")
    G.mainloop(A, False)
    G.stats_fin(A)
    A("s_lshl_b32 s33, s30, 11")
    A("s_add_u32 s33, s33, 0x20500")
    A(f"v_and_b32 v{T+2}, 31, v{T}")
    A(f"v_lshlrev_b32 v{T+2}, 2, v{T+2}")
    A(f"v_add_u32 v{T+2}, s33, v{T+2}")
    A(f"ds_write_b32 v{T+2}, v{G.SX}")
    A(f"ds_write_b32 v{T+2}, v{G.SQ} offset:128")
    A(f"v_lshrrev_b32 v{T+3}, 5, v{T}")
    A(f"v_lshlrev_b32 v{T+3}, 4, v{T+3}")
    A(f"v_add_u32 v{T+3}, s33, v{T+3}")
    A("s_waitcnt lgkmcnt(0)")
    for q4 in range(4):
        A(f"ds_read_b128 {vr(G.FX + 4 * q4, 4)}, v{T+3} offset:{q4 * 32}")
        A(f"ds_read_b128 {vr(G.FX + 16 + 4 * q4, 4)}, v{T+3} offset:{128 + q4 * 32}")
    A("s_waitcnt lgkmcnt(0)")
    for ci in range(5):
        for r in range(16):
            a = G.acc(0, ci) + r
            A(f"v_fma_f32 v{a}, -v{G.FX + r}, v{G.CS+ci}, v{a}")
            A(f"v_mul_f32 v{a}, v{G.FX + 16 + r}, v{a}")
    A(f"s_mov_b32 s38, {WS_V}")
    A(f"v_and_b32 v{T+3}, 31, v{T}")
    A(f"v_lshrrev_b32 v{T+2}, 5, v{T}")
    A("s_lshl_b32 s37, s30, 11")
    A("s_movk_i32 s39, 3277")
    for ci in range(5):
        A(f"v_add_u32 v{T+4}, {ci * 32}, v{T+3}")
        A(f"v_mul_lo_u32 v{T+5}, v{T+4}, s39")
        A(f"v_lshrrev_b32 v{T+5}, 16, v{T+5}")
        A(f"v_mul_u32_u24 v{T+6}, 20, v{T+5}")
        A(f"v_sub_u32 v{T+6}, v{T+4}, v{T+6}")
        A(f"v_lshlrev_b32 v{T+5}, 14, v{T+5}")
        A(f"v_add_u32 v{T+5}, s37, v{T+5}")
        A(f"v_bfe_u32 v{T+7}, v{T+6}, 2, 2")
        A(f"v_xor_b32 v{T+7}, v{T+7}, v{T+2}")
        A(f"v_lshlrev_b32 v{T+7}, 4, v{T+7}")
        A(f"v_lshl_add_u32 v{T+7}, v{T+6}, 6, v{T+7}")
        A(f"v_add_u32 v{T+7}, v{T+7}, v{T+5}")
        A(f"v_xor_b32 v{T+8}, 32, v{T+7}")
        A(f"v_add_u32 v{T+9}, 12, v{T+6}")
        A(f"v_bfe_u32 v{T+10}, v{T+9}, 2, 2")
        A(f"v_xor_b32 v{T+10}, v{T+10}, v{T+2}")
        A(f"v_lshlrev_b32 v{T+10}, 4, v{T+10}")
        A(f"v_lshl_add_u32 v{T+10}, v{T+9}, 6, v{T+10}")
        A(f"v_add_u32 v{T+10}, v{T+10}, v{T+5}")
        A(f"v_xor_b32 v{T+11}, 32, v{T+10}")
        A(f"v_cmp_eq_u32 vcc, 8, v{T+6}")
        A(f"v_mov_b32 v{T+12}, 0x3f803f80")
        A("s_nop 0")
        A(f"v_cndmask_b32 v{T+16}, 0, v{T+12}, vcc")
        A(f"v_mov_b32 v{T+17}, v{T+16}")
        A(f"v_mov_b32 v{T+18}, v{T+16}")
        A(f"v_mov_b32 v{T+19}, v{T+16}")
        A(f"v_cmp_le_u32 s[52:53], 8, v{T+6}")
        a = G.acc(0, ci)
        for s_ in range(2):
            for j in range(4):
                A(f"v_cvt_pk_bf16_f32 v{T+12+j}, v{a + 8 * s_ + 2 * j}, v{a + 8 * s_ + 2 * j + 1}")
            A(f"ds_write_b128 v{T+7+s_}, {vr(T+12, 4)}")
            A("s_nop 1")
        A("s_mov_b64 s[54:55], exec")
        A("s_and_b64 exec, exec, s[52:53]")
        A(f"ds_write_b128 v{T+10}, {vr(T+16, 4)}")
        A(f"ds_write_b128 v{T+11}, {vr(T+16, 4)}")
        A("s_mov_b64 exec, s[54:55]")
        A("s_nop 1")
    A.label("G1_copyout")
    A("s_add_u32 s44, s6, s38")
    A("s_addc_u32 s45, s7, 0")
    A(f"s_mov_b32 s46, {4 << 20}")
    A("s_mov_b32 s47, 0x00020000")
    A(f"v_lshlrev_b32 v{T+2}, 4, v{G.TID}")
    A(f"v_add_u32 v{T+4}, 0x10000, v{T+2}")
    A("s_and_b32 s37, s35, 3")
    A("s_lshl_b32 s37, s37, 20")
    A("s_lshl_b32 s39, s36, 6")
    A("s_add_u32 s37, s37, s39")
    A(f"v_add_u32 v{T+3}, s37, v{T+2}")
    A("s_waitcnt lgkmcnt(0)")
    A("s_barrier")
    for i in range(16):
        A(f"ds_read_b128 {vr(4 * i, 4)}, v{T+2 if i < 8 else T+4} offset:{(i & 7) * 8192}")
    for i in range(16):
        A(f"s_mov_b32 s39, {(i >> 1) * 131072 + (i & 1) * 8192}")
        A(f"s_waitcnt lgkmcnt({15 - i})")
        A(f"buffer_store_dwordx4 {vr(4 * i, 4)}, v{T+3}, s[44:47], s39 offen")
    A("s_branch G1_done")
    A.label("G1_glu")
    G = GemmB('glu')
    T = G.T
    A("s_sub_u32 s35, s35, 12")
    A("s_mul_i32 s37, s35, 192")
    G.setup(A, 32 * DF * 2)
    for st in range(3):
        G.issue(A, st)
    G.frag_setup(A)
    G.big_setup(A)
    for r in range(64):
        A(f"v_mov_b32 v{r}, 0")
    G.stats_init(A)
    G.mainloop(A, True)
    G.stats_fin(A)
    G.cs_exchange(A, G.FX)
    for ti in range(2):
        for ci in range(2):
            for r in range(16):
                a = G.acc(ti, ci) + r
                A(f"v_fma_f32 v{a}, -v{G.SX+ti}, v{G.FX + ci * 16 + r}, v{a}")
                A(f"v_mul_f32 v{a}, v{G.SQ+ti}, v{a}")
    IS = 208
    A(f"v_and_b32 v{T+2}, 31, v{T}")
    A("s_lshl_b32 s39, s31, 6")
    A(f"v_add_u32 v{T+2}, s39, v{T+2}")
    A(f"v_mul_u32_u24 v{T+2}, {IS}, v{T+2}")
    A("s_lshl_b32 s39, s32, 6")
    A(f"v_lshrrev_b32 v{T+3}, 5, v{T}")
    A(f"v_lshlrev_b32 v{T+3}, 3, v{T+3}")
    A(f"v_add3_u32 v{T+2}, v{T+2}, v{T+3}, s39")
    A("s_mov_b32 s38, 0x3d372713")
    A("s_mov_b32 s39, 0xc0135761")
    for ti in range(2):
        g = G.acc(ti, 0)
        u = G.acc(ti, 1)
        for q4 in range(4):
            for j in range(4):
                r = 4 * q4 + j
                t0 = T + 8 + j
                A(f"v_mul_f32 v{t0}, v{g + r}, v{g + r}")
                A(f"v_fma_f32 v{t0}, v{t0}, s38, 1.0")
                A(f"v_mul_f32 v{t0}, v{t0}, v{g + r}")
                A(f"v_mul_f32 v{t0}, s39, v{t0}")
                A(f"v_exp_f32 v{t0}, v{t0}")
                A(f"v_mul_f32 v{g + r}, v{g + r}, v{u + r}")
            for j in range(4):
                t0 = T + 8 + j
                A(f"v_add_f32 v{t0}, 1.0, v{t0}")
                A(f"v_rcp_f32 v{t0}, v{t0}")
            A("s_nop 0")
            for j in range(4):
                r = 4 * q4 + j
                t0 = T + 8 + j
                A(f"v_mul_f32 v{t0}, v{g + r}, v{t0}")
            A(f"v_cvt_pk_bf16_f32 v{T+12}, v{T+8}, v{T+9}")
            A(f"v_cvt_pk_bf16_f32 v{T+13}, v{T+10}, v{T+11}")
            A(f"ds_write_b64 v{T+2}, {vr(T+12, 2)} offset:{ti * 32 * IS + q4 * 16}")
    A(f"s_add_u32 s44, s6, {WS_H}")
    A("s_addc_u32 s45, s7, 0")
    A(f"s_mov_b32 s46, {S * DF * 2}")
    A("s_mov_b32 s47, 0x00020000")
    A("s_movk_i32 s33, 5462")
    A(f"v_mul_lo_u32 v{T+2}, v{G.TID}, s33")
    A(f"v_lshrrev_b32 v{T+2}, 16, v{T+2}")
    A(f"v_mul_u32_u24 v{T+3}, 12, v{T+2}")
    A(f"v_sub_u32 v{T+3}, v{G.TID}, v{T+3}")
    A(f"v_lshlrev_b32 v{T+3}, 4, v{T+3}")
    A(f"v_mul_u32_u24 v{T+4}, {IS}, v{T+2}")
    A(f"v_add_u32 v{T+4}, v{T+4}, v{T+3}")
    A(f"v_add_u32 v{T+2}, s36, v{T+2}")
    A(f"v_mul_u32_u24 v{T+2}, {DF * 2}, v{T+2}")
    A(f"v_add3_u32 v{T+2}, v{T+2}, v{T+3}, s37")
    A("s_waitcnt lgkmcnt(0)")
    A("s_barrier")
    for i in range(4):
        A(f"ds_read_b128 {vr(4 * i, 4)}, v{T+4} offset:{i * 64 * IS}")
    for i in range(4):
        A(f"s_mov_b32 s39, {i * 64 * DF * 2}")
        A(f"s_waitcnt lgkmcnt({3 - i})")
        A(f"buffer_store_dwordx4 {vr(4 * i, 4)}, v{T+2}, s[44:47], s39 offen")
    A.label("G1_done")
    A("s_endpgm")
    for q in range(768):
        assert (q * 2731) >> 16 == q // 24 and (q * 5462) >> 16 == q // 12
    return kernel_desc(name, max(GemmB('qkv').NV, G.NV)), 131072 + 24576, NWG


def gen_gemm2(A, TM, TN):
    name = "gemm2_kernel"
    G = Gemm(TM, TN)
    T = G.T
    ntt = S // G.BM
    nct = D // G.BN
    kernel_begin(A, name)
    A(f"s_cmp_ge_u32 s2, {ntt * nct}")
    A("s_cbranch_scc1 G2_done")
    A("s_load_dwordx2 s[4:5], s[0:1], 16")
    A("s_load_dwordx2 s[8:9], s[0:1], 48")
    A("s_load_dwordx2 s[10:11], s[0:1], 0")
    A("s_load_dwordx2 s[12:13], s[0:1], 56")
    A("s_load_dwordx2 s[6:7], s[0:1], 72")
    A("s_and_b32 s34, s2, 7")
    A("s_lshr_b32 s35, s2, 3")
    A(f"s_mul_i32 s33, s34, {ntt // 8}")
    A(f"s_and_b32 s34, s35, {ntt // 8 - 1}")
    A("s_add_u32 s34, s34, s33")
    A(f"s_lshr_b32 s35, s35, {(ntt // 8).bit_length() - 1}")
    G.setup(A)
    A(f"s_mul_i32 s36, s34, {G.BM}")
    A(f"s_mul_i32 s37, s35, {G.BN * 2}")
    A("s_waitcnt lgkmcnt(0)")
    A(f"s_add_u32 s14, s6, {WS_O}")
    A("s_addc_u32 s15, s7, 0")
    A(f"s_add_u32 s16, s6, {WS_H}")
    A("s_addc_u32 s17, s7, 0")
    A("s_mov_b32 s40, 64")
    A("s_mov_b32 s41, 0")
    A(f"s_mov_b32 s42, {32 * 1280}")
    A("s_mov_b32 s43, 0")
    G.xaddr(A, 14, 1280, 36)
    G.waddr_plain(A, 4, 1280, 37)
    G.fin_setup(A)
    A("s_sub_u32 s18, s8, s4")
    A("s_subb_u32 s19, s9, s5")
    A(f"s_sub_u32 s18, s18, {640 * 1280}")
    A("s_subb_u32 s19, s19, 0")

    def hook(A, kt):
        if kt == 20:
            G.xaddr(A, 16, DF * 2, 36)
            for j in range(G.nw):
                A(f"v_lshl_add_u64 {vr(G.GW+2*j, 2)}, {vr(G.GW+2*j, 2)}, 0, s[18:19]")

    G.mainloop(A, 20 + 54, True, hook)
    IS = G.BN * 4 + 16
    A(f"v_and_b32 v{T+2}, 31, v{T}")
    A(f"s_mul_i32 s39, s31, {32 * TM}")
    A(f"v_add_u32 v{T+2}, s39, v{T+2}")
    A(f"v_mul_u32_u24 v{T+2}, {IS}, v{T+2}")
    A(f"s_mul_i32 s39, s32, {128 * TN}")
    A(f"v_lshrrev_b32 v{T+3}, 5, v{T}")
    A(f"v_lshlrev_b32 v{T+3}, 4, v{T+3}")
    A(f"v_add3_u32 v{T+2}, v{T+2}, v{T+3}, s39")
    for ti in range(TM):
        for ci in range(TN):
            for q4 in range(4):
                A(f"ds_write_b128 v{T+2}, {vr(G.acc(ti, ci) + 4 * q4, 4)} offset:{ti * 32 * IS + ci * 128 + q4 * 32}")
    A("s_mov_b32 s44, s10")
    A("s_mov_b32 s45, s11")
    A(f"s_mov_b32 s46, {S * D * 2}")
    A("s_mov_b32 s47, 0x00020000")
    A("s_mov_b32 s48, s12")
    A("s_mov_b32 s49, s13")
    A(f"s_mov_b32 s50, {S * D * 2}")
    A("s_mov_b32 s51, 0x00020000")
    cpr = G.BN // 8
    rpi = 256 // cpr
    nit = G.BM // rpi
    A(f"v_lshrrev_b32 v{T+2}, {cpr.bit_length() - 1}, v{G.TID}")
    A(f"v_and_b32 v{T+3}, {cpr - 1}, v{G.TID}")
    A(f"v_lshlrev_b32 v{T+5}, 5, v{T+3}")
    A(f"v_mul_u32_u24 v{T+4}, {IS}, v{T+2}")
    A(f"v_add_u32 v{T+4}, v{T+4}, v{T+5}")
    A(f"v_add_u32 v{T+2}, s36, v{T+2}")
    A(f"v_mul_u32_u24 v{T+2}, 1280, v{T+2}")
    A(f"v_lshlrev_b32 v{T+3}, 4, v{T+3}")
    A(f"v_add3_u32 v{T+2}, v{T+2}, v{T+3}, s37")
    for i in range(nit):
        A(f"s_mov_b32 s39, {i * rpi * 1280}")
        A(f"buffer_load_dwordx4 {vr(48 + 4 * i, 4)}, v{T+2}, s[44:47], s39 offen")
    A("s_waitcnt lgkmcnt(0)")
    A("s_barrier")
    for i in range(nit):
        A(f"ds_read_b128 {vr(8 * i, 4)}, v{T+4} offset:{i * rpi * IS}")
        A(f"ds_read_b128 {vr(8 * i + 4, 4)}, v{T+4} offset:{i * rpi * IS + 16}")
    for i in range(nit):
        A(f"s_waitcnt vmcnt({nit - 1 - i}) lgkmcnt({2 * (nit - 1 - i)})")
        for j in range(4):
            xr = 48 + 4 * i + j
            A(f"v_lshlrev_b32 v{T+6}, 16, v{xr}")
            A(f"v_and_b32 v{T+7}, 0xffff0000, v{xr}")
            A(f"v_add_f32 v{T+6}, v{T+6}, v{8 * i + 2 * j}")
            A(f"v_add_f32 v{T+7}, v{T+7}, v{8 * i + 2 * j + 1}")
            A(f"v_cvt_pk_bf16_f32 v{xr}, v{T+6}, v{T+7}")
        A(f"s_mov_b32 s39, {i * rpi * 1280}")
        A(f"buffer_store_dwordx4 {vr(48 + 4 * i, 4)}, v{T+2}, s[48:51], s39 offen")
    A.label("G2_done")
    A("s_endpgm")
    return kernel_desc(name, max(G.NV, 48 + 4 * nit + 8)), G.LDS, ntt * nct


ACH = 256
ABUF = 32768
LDS_ATT = 3 * ABUF


def gen_attn(A):
    name = "attn_kernel"
    kernel_begin(A, name)
    A0 = A

    class F:
        inloop = False

        def __call__(self, s):
            if self.inloop:
                if 'AT_NOMFMA' in FL and s.startswith('v_mfma'):
                    return
                if 'AT_NODS' in FL and s.startswith('ds_read'):
                    return
                if 'AT_NOMAX' in FL and (s.startswith('v_max3') or s.startswith('v_permlane') or s.startswith('s_nop 1')):
                    return
                if 'AT_NOSYNC' in FL and (s.startswith('s_barrier') or s.startswith('buffer_load') or s.startswith('s_waitcnt vmcnt')):
                    return
                if 'AT_NOCVT' in FL and s.startswith('v_cvt_pk'):
                    return
            A0(s)

        def label(self, l):
            A0.label(l)
            if l == 'AT_loop':
                self.inloop = True

        def newlabel(self, p):
            return A0.newlabel(p)

        def raw(self, s):
            A0.raw(s)
    A = F()
    O = 0
    SS = (16, 32)
    QF = 48
    KF = 56
    VF = 64
    PF = 72
    AC0, AC1, AN0, AN1 = 80, 81, 82, 83
    M = 84
    FLOOR = 85
    GO = 86
    LN_ = 87
    B0, B1 = 88, 89
    THR = 90
    T = 92
    A("s_cmp_ge_u32 s2, 256")
    A("s_cbranch_scc1 AT_done")
    A("s_load_dwordx2 s[6:7], s[0:1], 72")
    A("s_and_b32 s34, s2, 31")
    A("s_lshr_b32 s35, s2, 5")
    A(f"v_and_b32 v{LN_}, 63, v0")
    A(f"v_lshrrev_b32 v{T+1}, 6, v0")
    A("s_nop 0")
    A(f"v_readfirstlane_b32 s30, v{T+1}")
    A("s_waitcnt lgkmcnt(0)")
    A("s_lshl_b32 s36, s34, 17")
    for (sd, off) in ((8, WS_Q), (12, WS_K), (16, WS_V)):
        A(f"s_add_u32 s{sd}, s6, {off}")
        A(f"s_addc_u32 s{sd+1}, s7, 0")
        A(f"s_add_u32 s{sd}, s{sd}, s36")
        A(f"s_addc_u32 s{sd+1}, s{sd+1}, 0")
        A(f"s_mov_b32 s{sd+2}, {HEADB}")
        A(f"s_mov_b32 s{sd+3}, 0x00020000")
    A(f"s_add_u32 s20, s6, {WS_O}")
    A("s_addc_u32 s21, s7, 0")
    A(f"s_mov_b32 s22, {S * D * 2}")
    A("s_mov_b32 s23, 0x00020000")
    A("s_lshl_b32 s31, s30, 11")
    A(f"v_lshlrev_b32 v{GO}, 4, v{LN_}")
    A(f"v_add_u32 v{GO}, s31, v{GO}")

    def dma(buf_s, chunk_s):
        A(f"s_add_u32 m0, s{buf_s}, s31")
        A("s_nop 0")
        A(f"buffer_load_dwordx4 v{GO}, s[12:15], s{chunk_s} offen lds")
        A(f"buffer_load_dwordx4 v{GO}, s[12:15], s{chunk_s} offen offset:1024 lds")
        A(f"s_add_u32 m0, m0, 16384")
        A("s_nop 0")
        A(f"buffer_load_dwordx4 v{GO}, s[16:19], s{chunk_s} offen lds")
        A(f"buffer_load_dwordx4 v{GO}, s[16:19], s{chunk_s} offen offset:1024 lds")

    A(f"v_and_b32 v{T+2}, 31, v{LN_}")
    A(f"v_lshrrev_b32 v{T+3}, 5, v{LN_}")
    A("s_lshl_b32 s36, s35, 8")
    A("s_lshl_b32 s37, s30, 5")
    A("s_add_u32 s36, s36, s37")
    A(f"v_add_u32 v{T+4}, s36, v{T+2}")
    A(f"v_lshlrev_b32 v{T+4}, 6, v{T+4}")
    A(f"v_lshl_add_u32 v{T+4}, v{T+3}, 4, v{T+4}")
    A(f"buffer_load_dwordx4 {vr(QF, 4)}, v{T+4}, s[8:11], 0 offen")
    A(f"buffer_load_dwordx4 {vr(QF+4, 4)}, v{T+4}, s[8:11], 0 offen offset:32")
    A("s_mov_b32 s44, 0")
    A(f"s_mov_b32 s45, {ABUF}")
    A(f"s_mov_b32 s46, {2 * ABUF}")
    A("s_mov_b32 s47, 0")
    dma(44, 47)
    A("s_movk_i32 s47, 16384")
    dma(45, 47)
    A("s_mov_b32 s47, 32768")
    A(f"v_bfe_u32 v{T+4}, v{LN_}, 2, 2")
    A(f"v_xor_b32 v{T+5}, v{T+3}, v{T+4}")
    A(f"v_lshlrev_b32 v{T+5}, 4, v{T+5}")
    A(f"v_lshl_add_u32 v{B0}, v{T+2}, 6, v{T+5}")
    A(f"v_xor_b32 v{B1}, 32, v{B0}")
    for r in range(16):
        A(f"v_mov_b32 v{O+r}, 0")
    A(f"v_mov_b32 v{M}, 0")
    A(f"v_mov_b32 v{FLOOR}, 0xff7fffff")
    A(f"v_mov_b32 v{THR}, 0xff7fffff")
    A(f"v_cmp_gt_u32 s[48:49], 32, v{LN_}")
    A("s_mov_b32 s40, 0")
    A("s_waitcnt vmcnt(4)")
    A("s_barrier")
    A(f"v_mov_b32 v{AC0}, v{B0}")
    A(f"v_mov_b32 v{AC1}, v{B1}")
    A(f"v_add_u32 v{AN0}, s45, v{B0}")
    A(f"v_add_u32 v{AN1}, s45, v{B1}")
    A(f"ds_read_b128 {vr(KF, 4)}, v{AC0}")
    A(f"ds_read_b128 {vr(KF+4, 4)}, v{AC1}")
    for j in range(8):
        A(f"v_mov_b32 v{PF+j}, 0")
        A(f"v_mov_b32 v{VF+j}, 0")
    A("s_waitcnt lgkmcnt(0)")
    A(f"v_mfma_f32_32x32x16_bf16 {vr(SS[0], 16)}, {vr(KF, 4)}, {vr(QF, 4)}, 0")
    A(f"v_mfma_f32_32x32x16_bf16 {vr(SS[0], 16)}, {vr(KF+4, 4)}, {vr(QF+4, 4)}, {vr(SS[0], 16)}")
    A(f"ds_read_b128 {vr(KF, 4)}, v{AC0} offset:2048")
    A(f"ds_read_b128 {vr(KF+4, 4)}, v{AC1} offset:2048")
    A("s_nop 15")
    A.label("AT_loop")
    for tl in range(8):
        SC, SN = SS[tl & 1], SS[(tl & 1) ^ 1]
        lab = A.newlabel("AT_nors")
        if tl == 4:
            A("s_waitcnt vmcnt(0)")
            A("s_barrier")
            A("s_cmp_lt_u32 s40, 6")
            lab2 = A.newlabel("AT_nodma")
            A(f"s_cbranch_scc0 {lab2}")
            dma(46, 47)
            A("s_add_u32 s47, s47, 16384")
            A.label(lab2)
        A("s_waitcnt lgkmcnt(2)")
        A(f"v_mfma_f32_32x32x16_bf16 {vr(O, 16)}, {vr(VF, 4)}, {vr(PF, 4)}, {vr(O, 16)}")
        A(f"v_max3_f32 v{T+2}, v{SC}, v{SC+1}, v{SC+2}")
        A(f"v_max3_f32 v{T+3}, v{SC+3}, v{SC+4}, v{SC+5}")
        A(f"v_max3_f32 v{T+2}, v{T+2}, v{SC+6}, v{SC+7}")
        A(f"v_max3_f32 v{T+3}, v{T+3}, v{SC+8}, v{SC+9}")
        A(f"v_max3_f32 v{T+2}, v{T+2}, v{SC+10}, v{SC+11}")
        A(f"v_max3_f32 v{T+3}, v{T+3}, v{SC+12}, v{SC+13}")
        A(f"v_mfma_f32_32x32x16_bf16 {vr(O, 16)}, {vr(VF+4, 4)}, {vr(PF+4, 4)}, {vr(O, 16)}")
        A(f"v_max3_f32 v{T+2}, v{T+2}, v{SC+14}, v{SC+15}")
        A(f"v_max_f32 v{T+2}, v{T+2}, v{T+3}")
        A(f"v_mov_b32 v{T+3}, v{T+2}")
        A("s_nop 1")
        A(f"v_permlane32_swap_b32 v{T+2}, v{T+3}")
        A("s_nop 1")
        A(f"v_max_f32 v{T+2}, v{T+2}, v{T+3}")
        A(f"v_cmp_gt_f32 vcc, v{T+2}, v{THR}")
        A(f"s_cbranch_vccz {lab}")
        A(f"v_max_f32 v{T+2}, v{T+2}, v{FLOOR}")
        A(f"v_mov_b32 v{FLOOR}, 0")
        A(f"v_mov_b32 v{THR}, 0x41000000")
        A(f"v_add_f32 v{M}, v{M}, v{T+2}")
        A(f"v_min_f32 v{T+3}, 0, v{T+2}")
        A(f"v_sub_f32 v{T+3}, v{T+3}, v{T+2}")
        A(f"v_exp_f32 v{T+3}, v{T+3}")
        for r in range(16):
            A(f"v_sub_f32 v{SC+r}, v{SC+r}, v{T+2}")
        A(f"v_sub_f32 v{T+4}, 0, v{M}")
        A(f"v_cvt_pk_bf16_f32 v{T+5}, v{T+4}, v{T+4}")
        A(f"v_and_b32 v{T+5}, 0xffff0000, v{T+5}")
        A(f"v_sub_f32 v{T+4}, v{T+4}, v{T+5}")
        A(f"v_cvt_pk_bf16_f32 v{T+6}, v{T+4}, v{T+4}")
        A(f"v_and_b32 v{T+6}, 0xffff0000, v{T+6}")
        A(f"v_sub_f32 v{T+4}, v{T+4}, v{T+6}")
        A(f"v_cvt_pk_bf16_f32 v{T+4}, v{T+4}, v{T+4}")
        A(f"v_and_b32 v{T+4}, 0xffff, v{T+4}")
        A(f"v_lshrrev_b32 v{T+5}, 16, v{T+5}")
        A(f"v_or_b32 v{T+5}, v{T+5}, v{T+6}")
        A(f"v_cndmask_b32 v{QF+6}, 0, v{T+5}, s[48:49]")
        A(f"v_cndmask_b32 v{QF+7}, 0, v{T+4}, s[48:49]")
        A("s_nop 15")
        for r in range(12):
            A(f"v_mul_f32 v{O+r}, v{O+r}, v{T+3}")
        A.label(lab)
        A(f"ds_read_b128 {vr(VF, 4)}, v{AC0} offset:{16384 + tl * 2048}")
        A(f"ds_read_b128 {vr(VF+4, 4)}, v{AC1} offset:{16384 + tl * 2048}")
        A("s_waitcnt lgkmcnt(2)")
        A(f"v_mfma_f32_32x32x16_bf16 {vr(SN, 16)}, {vr(KF, 4)}, {vr(QF, 4)}, 0")
        for r in range(0, 6):
            if 'NOEXP' not in FL:
                A(f"v_exp_f32 v{SC+r}, v{SC+r}")
        A(f"v_mfma_f32_32x32x16_bf16 {vr(SN, 16)}, {vr(KF+4, 4)}, {vr(QF+4, 4)}, {vr(SN, 16)}")
        for r in range(6, 12):
            if 'NOEXP' not in FL:
                A(f"v_exp_f32 v{SC+r}, v{SC+r}")
        for j in range(3):
            A(f"v_cvt_pk_bf16_f32 v{PF+j}, v{SC+2*j}, v{SC+2*j+1}")
        if tl + 2 < 8:
            A(f"ds_read_b128 {vr(KF, 4)}, v{AC0} offset:{(tl + 2) * 2048}")
            A(f"ds_read_b128 {vr(KF+4, 4)}, v{AC1} offset:{(tl + 2) * 2048}")
        else:
            A(f"ds_read_b128 {vr(KF, 4)}, v{AN0} offset:{(tl - 6) * 2048}")
            A(f"ds_read_b128 {vr(KF+4, 4)}, v{AN1} offset:{(tl - 6) * 2048}")
        for r in range(12, 16):
            if 'NOEXP' not in FL:
                A(f"v_exp_f32 v{SC+r}, v{SC+r}")
        for j in range(3, 8):
            A(f"v_cvt_pk_bf16_f32 v{PF+j}, v{SC+2*j}, v{SC+2*j+1}")
        A("s_nop 0")
    A("s_mov_b32 s43, s44")
    A("s_mov_b32 s44, s45")
    A("s_mov_b32 s45, s46")
    A("s_mov_b32 s46, s43")
    A(f"v_mov_b32 v{AC0}, v{AN0}")
    A(f"v_mov_b32 v{AC1}, v{AN1}")
    A(f"v_add_u32 v{AN0}, s45, v{B0}")
    A(f"v_add_u32 v{AN1}, s45, v{B1}")
    A("s_add_u32 s40, s40, 1")
    A("s_cmp_lt_u32 s40, 8")
    A("s_cbranch_scc1 AT_loop")
    A.inloop = False
    A("s_waitcnt lgkmcnt(0)")
    A(f"v_mfma_f32_32x32x16_bf16 {vr(O, 16)}, {vr(VF, 4)}, {vr(PF, 4)}, {vr(O, 16)}")
    A(f"v_mfma_f32_32x32x16_bf16 {vr(O, 16)}, {vr(VF+4, 4)}, {vr(PF+4, 4)}, {vr(O, 16)}")
    A("s_nop 15")
    A("s_nop 3")
    A(f"v_mov_b32 v{T+2}, v{O+8}")
    A(f"v_mov_b32 v{T+3}, v{O+8}")
    A("s_nop 1")
    A(f"v_permlane32_swap_b32 v{T+2}, v{T+3}")
    A("s_nop 1")
    A(f"v_cndmask_b32 v{T+2}, v{O+8}, v{T+3}, s[48:49]")
    A(f"v_rcp_f32 v{T+2}, v{T+2}")
    A("s_nop 0")
    for r in range(12):
        A(f"v_mul_f32 v{O+r}, v{O+r}, v{T+2}")
    A(f"v_and_b32 v{T+3}, 31, v{LN_}")
    A(f"v_add_u32 v{T+3}, s36, v{T+3}")
    A(f"v_mul_u32_u24 v{T+3}, 1280, v{T+3}")
    A("s_mul_i32 s37, s34, 40")
    A(f"v_lshrrev_b32 v{T+4}, 5, v{LN_}")
    A(f"v_lshlrev_b32 v{T+4}, 3, v{T+4}")
    A(f"v_add3_u32 v{T+3}, v{T+3}, v{T+4}, s37")
    for g in range(3):
        A(f"v_cvt_pk_bf16_f32 v{T+4}, v{O+4*g}, v{O+4*g+1}")
        A(f"v_cvt_pk_bf16_f32 v{T+5}, v{O+4*g+2}, v{O+4*g+3}")
        if g == 2:
            A("s_mov_b64 exec, s[48:49]")
        A(f"buffer_store_dwordx2 {vr(T+4, 2)}, v{T+3}, s[20:23], 0 offen offset:{16 * g}")
    A.label("AT_done")
    A("s_endpgm")
    return kernel_desc(name, 104)


def main():
    A = Asm()
    hdr = open("parallel_sum__mha_block__glu_gated_geglu__prompt.s.ref").read().split("; Override")[0]
    descs = []
    d1, lds1, n1 = gen_gemm1(A)
    descs.append(d1)
    descs.append(gen_attn(A))
    d2, lds2, n2 = gen_gemm2(A, 1, 2)
    descs.append(d2)
    out = hdr
    out += f"; @launch kernel=gemm1_kernel grid=({n1},1,1) block=(768,1,1) lds={lds1}\n"
    out += f"; @launch kernel=attn_kernel grid=(256,1,1) block=(512,1,1) lds={LDS_ATT}\n"
    out += f"; @launch kernel=gemm2_kernel grid=({n2},1,1) block=(256,1,1) lds={lds2}\n"
    out += '.amdgcn_target "amdgcn-amd-amdhsa--gfx950"\n.text\n'
    out += "\n".join(A.lines) + "\n"
    out += "".join(descs)
    dst = sys.argv[1] if len(sys.argv) > 1 else "parallel_sum__mha_block__glu_gated_geglu__prompt.s"
    open(dst, "w").write(out)


if __name__ == "__main__":
    main()
```

```python
import os
import struct
import sys

FL = set(os.environ.get('FLAGS', '').split(','))

from gen import Asm, vr, sr, kernel_begin, kernel_desc, gen_ln

S = 2048
D = 640
H = 32
DH = 20
DF = 1728

WS_XN = 0
WS_Q = 4 << 20
WS_K = 8 << 20
WS_V = 12 << 20
WS_H = 16 << 20
WS_P = 32 << 20
WS_O = 24 << 20
HEADB = 2048 * 64

CSCALE = DH ** -0.5 * 1.4426950408889634


def fbits(x):
    return struct.unpack("<I", struct.pack("<f", x))[0]


NST = 4


STAMPN = [0]


def stamp(A):
    n = STAMPN[0]
    if n < 15:
        A(f"s_memtime s[{60 + 2 * n}:{61 + 2 * n}]")
    STAMPN[0] += 1


class Gemm:
    def __init__(self, TM, TN, WM=2, WN=2):
        self.TM, self.TN, self.WM, self.WN = TM, TN, WM, WN
        NW = WM * WN
        self.BM, self.BN = 32 * TM * WM, 32 * TN * WN
        self.RS = self.BN * 2
        self.XB = self.BM * 64
        self.WB = self.BN * 64
        self.STAGE = self.XB + self.WB
        self.LDS = NST * self.STAGE
        self.nx = self.BM // 16 // NW
        self.nwi = self.BN // 16
        self.nw = (self.nwi + NW - 1) // NW
        self.mode = {64: 'x1', 128: 'x2', 160: 'lin'}[self.BN]
        self.naw = 2 if self.mode == 'x2' else 1
        self.ACC = 0
        n = TM * TN * 16
        self.FX = n
        self.FW = self.FX + 8 * TM
        self.AX = self.FW + 8 * TN
        self.AW = self.AX + 2
        self.GX = self.AW + 2
        self.GW = self.GX + 2 * self.nx
        self.TID = self.GW + 2 * self.nw
        self.T = self.TID + 1
        if self.T & 1:
            self.T += 1
        self.NV = self.T + 24

    def acc(self, ti, ci):
        return self.ACC + (ti * self.TN + ci) * 16

    def setup(self, A):
        T = self.T
        A(f"v_mov_b32 v{self.TID}, v0")
        A(f"v_and_b32 v{T}, 63, v0")
        A(f"v_lshrrev_b32 v{T+1}, 6, v0")
        A("s_nop 0")
        A(f"v_readfirstlane_b32 s30, v{T+1}")
        A("s_nop 3")
        if self.WN == 2:
            A("s_lshr_b32 s31, s30, 1")
            A("s_and_b32 s32, s30, 1")
        else:
            A("s_mov_b32 s31, s30")
            A("s_mov_b32 s32, 0")
        A(f"v_and_b32 v{T+2}, 31, v{T}")
        A(f"s_mul_i32 s33, s31, {32 * self.TM}")
        A(f"v_add_u32 v{T+2}, s33, v{T+2}")
        A(f"v_lshrrev_b32 v{T+3}, 5, v{T}")
        A(f"v_bfe_u32 v{T+4}, v{T}, 2, 2")
        A(f"v_xor_b32 v{T+3}, v{T+3}, v{T+4}")
        A(f"v_lshlrev_b32 v{T+3}, 4, v{T+3}")
        A(f"v_lshl_add_u32 v{self.AX}, v{T+2}, 6, v{T+3}")
        A(f"v_xor_b32 v{self.AX+1}, 32, v{self.AX}")
        RS = self.RS
        A(f"v_lshrrev_b32 v{T+2}, 5, v{T}")
        A(f"v_lshlrev_b32 v{T+2}, 3, v{T+2}")
        A(f"v_bfe_u32 v{T+3}, v{T}, 2, 2")
        A(f"v_add_u32 v{T+2}, v{T+2}, v{T+3}")
        A(f"v_mul_u32_u24 v{T+2}, {RS}, v{T+2}")
        if self.mode == 'x2':
            A("s_lshl_b32 s33, s32, 1")
            A(f"v_xor_b32 v{T+3}, s33, v{T+3}")
            A(f"v_lshl_add_u32 v{T+2}, v{T+3}, 6, v{T+2}")
        elif self.mode == 'x1':
            A(f"v_lshrrev_b32 v{T+3}, 1, v{T+3}")
            A(f"v_xor_b32 v{T+3}, s32, v{T+3}")
            A(f"v_lshl_add_u32 v{T+2}, v{T+3}, 6, v{T+2}")
        A(f"v_bfe_u32 v{T+3}, v{T}, 4, 1")
        A(f"v_lshl_add_u32 v{T+2}, v{T+3}, 5, v{T+2}")
        A(f"v_and_b32 v{T+3}, 3, v{T}")
        A(f"v_lshl_add_u32 v{T+2}, v{T+3}, 3, v{T+2}")
        A(f"v_add_u32 v{self.AW}, {self.XB}, v{T+2}")
        if self.mode == 'x2':
            A(f"v_xor_b32 v{self.AW+1}, 64, v{self.AW}")
        A(f"s_mul_i32 s28, s30, {self.nx * 1024}")
        for j in range(self.nw):
            if self.mode == 'lin':
                A(f"s_add_u32 s{24+j}, s30, {4 * j}")
                A(f"s_min_u32 s{24+j}, s{24+j}, {self.nwi - 1}")
            else:
                A(f"s_mul_i32 s{24+j}, s30, {self.nw}")
                A(f"s_add_u32 s{24+j}, s{24+j}, {j}")

    def xaddr(self, A, base_s, xstride, tok0_s):
        T = self.T
        A(f"v_lshrrev_b32 v{T+2}, 2, v{T}")
        A(f"s_mul_i32 s33, s30, {16 * self.nx}")
        A(f"s_add_u32 s33, s33, s{tok0_s}")
        A(f"v_add_u32 v{T+2}, s33, v{T+2}")
        A(f"s_mov_b32 s33, {xstride}")
        A(f"v_mul_lo_u32 v{T+2}, v{T+2}, s33")
        A(f"v_and_b32 v{T+3}, 3, v{T}")
        A(f"v_bfe_u32 v{T+4}, v{T}, 4, 2")
        A(f"v_xor_b32 v{T+3}, v{T+3}, v{T+4}")
        A(f"v_lshl_add_u32 v{T+2}, v{T+3}, 4, v{T+2}")
        for j in range(self.nx):
            if j:
                A(f"v_add_u32 v{T+2}, {16 * xstride}, v{T+2}")
            A(f"v_mov_b32 v{self.GX+2*j+1}, s{base_s+1}")
            A(f"v_add_co_u32 v{self.GX+2*j}, vcc, s{base_s}, v{T+2}")
            A("s_nop 1")
            A(f"v_addc_co_u32 v{self.GX+2*j+1}, vcc, 0, v{self.GX+2*j+1}, vcc")

    def wlane(self, A, j):
        T = self.T
        if self.mode == 'x2':
            A(f"v_lshrrev_b32 v{T+2}, 4, v{T}")
            A(f"v_bfe_u32 v{T+3}, v{T}, 2, 2")
            A(f"v_xor_b32 v{T+3}, v{T+3}, v{T+2}")
            A(f"s_lshl_b32 s33, s{24+j}, 2")
            A(f"v_add_u32 v{T+2}, s33, v{T+2}")
            A(f"v_and_b32 v{T+4}, 3, v{T}")
        elif self.mode == 'x1':
            A(f"v_lshrrev_b32 v{T+2}, 3, v{T}")
            A(f"v_bfe_u32 v{T+3}, v{T}, 2, 1")
            A(f"v_bfe_u32 v{T+4}, v{T}, 4, 1")
            A(f"v_xor_b32 v{T+3}, v{T+3}, v{T+4}")
            A(f"s_lshl_b32 s33, s{24+j}, 3")
            A(f"v_add_u32 v{T+2}, s33, v{T+2}")
            A(f"v_and_b32 v{T+4}, 3, v{T}")
        else:
            A(f"s_lshl_b32 s33, s{24+j}, 6")
            A(f"v_add_u32 v{T+5}, s33, v{T}")
            A("s_movk_i32 s33, 3277")
            A(f"v_mul_lo_u32 v{T+2}, v{T+5}, s33")
            A(f"v_lshrrev_b32 v{T+2}, 16, v{T+2}")
            A(f"v_mul_u32_u24 v{T+3}, 20, v{T+2}")
            A(f"v_sub_u32 v{T+5}, v{T+5}, v{T+3}")
            A(f"v_lshrrev_b32 v{T+3}, 2, v{T+5}")
            A(f"v_and_b32 v{T+4}, 3, v{T+5}")

    def waddr_plain(self, A, base_s, wstride, col0b_s):
        T = self.T
        for j in range(self.nw):
            self.wlane(A, j)
            A(f"s_mov_b32 s33, {wstride}")
            A(f"v_mul_lo_u32 v{T+2}, v{T+2}, s33")
            A(f"v_lshl_add_u32 v{T+2}, v{T+3}, 6, v{T+2}")
            A(f"v_lshl_add_u32 v{T+2}, v{T+4}, 4, v{T+2}")
            A(f"v_add_u32 v{T+2}, s{col0b_s}, v{T+2}")
            A(f"v_mov_b32 v{self.GW+2*j+1}, s{base_s+1}")
            A(f"v_add_co_u32 v{self.GW+2*j}, vcc, s{base_s}, v{T+2}")
            A("s_nop 1")
            A(f"v_addc_co_u32 v{self.GW+2*j+1}, vcc, 0, v{self.GW+2*j+1}, vcc")

    def fin_setup(self, A):
        for j in range(self.nw):
            A(f"s_lshl_b32 s{24+j}, s{24+j}, 10")
            A(f"s_add_u32 s{24+j}, s{24+j}, {self.XB}")

    def issue(self, A, st):
        for j in range(self.nx):
            A(f"s_add_u32 m0, s28, {st * self.STAGE + j * 1024}")
            A("s_nop 0")
            A(f"global_load_lds_dwordx4 {vr(self.GX+2*j, 2)}, off")
            A(f"v_lshl_add_u64 {vr(self.GX+2*j, 2)}, {vr(self.GX+2*j, 2)}, 0, s[40:41]")
        for j in range(self.nw):
            A(f"s_add_u32 m0, s{24+j}, {st * self.STAGE}")
            A("s_nop 0")
            A(f"global_load_lds_dwordx4 {vr(self.GW+2*j, 2)}, off")
            A(f"v_lshl_add_u64 {vr(self.GW+2*j, 2)}, {vr(self.GW+2*j, 2)}, 0, s[42:43]")

    def read_frags(self, A, st, ks, fs):
        RS = self.RS
        for ti in range(self.TM):
            A(f"ds_read_b128 {vr(self.FX + fs * 4 * self.TM + ti * 4, 4)}, v{self.AX+ks} offset:{st * self.STAGE + ti * 2048}")
        for ci in range(self.TN):
            for t in range(2):
                if self.mode == 'x2':
                    A(f"ds_read_b64_tr_b16 {vr(self.FW + fs * 4 * self.TN + ci * 4 + 2 * t, 2)}, v{self.AW+ci} offset:{st * self.STAGE + (ks * 16 + 4 * t) * RS}")
                else:
                    A(f"ds_read_b64_tr_b16 {vr(self.FW + fs * 4 * self.TN + ci * 4 + 2 * t, 2)}, v{self.AW} offset:{st * self.STAGE + (ks * 16 + 4 * t) * RS + ci * 64}")

    def mfmas(self, A, fs, swapped):
        for ti in range(self.TM):
            for ci in range(self.TN):
                acc = vr(self.acc(ti, ci), 16)
                fx = vr(self.FX + fs * 4 * self.TM + ti * 4, 4)
                fw = vr(self.FW + fs * 4 * self.TN + ci * 4, 4)
                if swapped:
                    A(f"v_mfma_f32_32x32x16_bf16 {acc}, {fw}, {fx}, {acc}")
                else:
                    A(f"v_mfma_f32_32x32x16_bf16 {acc}, {fx}, {fw}, {acc}")

    def mainloop(self, A, nkt, swapped, hook=None):
        npw = self.nx + self.nw
        nrd = self.TM + 2 * self.TN
        for r in range(self.TM * self.TN * 16):
            A(f"v_mov_b32 v{self.ACC + r}, 0")
        for kt in range(min(3, nkt)):
            if hook:
                hook(A, kt)
            self.issue(A, kt % NST)
        for kt in range(nkt):
            st = kt % NST
            if 'STAMP' in FL and kt in (0, 1, 2, 3, 6, 10, 14, 19):
                stamp(A)
            inflight = min(nkt, kt + 3) - kt - 1
            A(f"s_waitcnt vmcnt({inflight * npw})")
            A("s_barrier")
            self.read_frags(A, st, 0, 0)
            self.read_frags(A, st, 1, 1)
            if kt + 3 < nkt:
                if hook:
                    hook(A, kt + 3)
                self.issue(A, (kt + 3) % NST)
            A(f"s_waitcnt lgkmcnt({min(nrd, 15)})")
            self.mfmas(A, 0, swapped)
            A("s_waitcnt lgkmcnt(0)")
            self.mfmas(A, 1, swapped)
        if 'STAMP' in FL:
            stamp(A)
        A("s_barrier")
        A("s_nop 15")


class GemmB:
    def __init__(self, kind):
        self.kind = kind
        if kind == 'qkv':
            self.TM, self.TN, self.BN = 1, 5, 160
        else:
            self.TM, self.TN, self.BN = 2, 2, 192
        self.RS = self.BN * 2
        self.XB = 256 * 64
        self.WB = self.BN * 64
        self.STAGE = self.XB + self.WB
        self.nwi = self.BN // 16
        self.cpr = self.RS // 16
        self.ACC = 0
        n = self.TM * self.TN * 16
        self.FX = n
        self.FW = self.FX + 8 * self.TM
        self.AX = self.FW + 8 * self.TN
        self.AW = self.AX + 2
        self.GA = self.AW + 2
        self.TID = self.GA + 6
        self.T = self.TID + 2
        self.NV = self.T + 22

    def acc(self, ti, ci):
        return self.ACC + (ti * self.TN + ci) * 16

    def xaddr_one(self, A, dst, idx_s):
        T = self.T
        A(f"s_lshl_b32 s33, s{idx_s}, 4")
        A("s_add_u32 s33, s33, s36")
        A(f"v_lshrrev_b32 v{T+2}, 2, v{T}")
        A(f"v_add_u32 v{T+2}, s33, v{T+2}")
        A(f"v_mul_u32_u24 v{T+2}, 1280, v{T+2}")
        A(f"v_and_b32 v{T+3}, 3, v{T}")
        A(f"v_bfe_u32 v{T+4}, v{T}, 4, 2")
        A(f"v_xor_b32 v{T+3}, v{T+3}, v{T+4}")
        A(f"v_lshl_add_u32 v{T+2}, v{T+3}, 4, v{T+2}")
        A(f"v_mov_b32 v{dst+1}, s7")
        A(f"v_add_co_u32 v{dst}, vcc, s6, v{T+2}")
        A("s_nop 1")
        A(f"v_addc_co_u32 v{dst+1}, vcc, 0, v{dst+1}, vcc")

    def waddr_one(self, A, dst, idx_s):
        T = self.T
        A(f"s_lshl_b32 s33, s{idx_s}, 6")
        A(f"v_add_u32 v{T+5}, s33, v{T}")
        if self.kind == 'qkv':
            A("s_movk_i32 s33, 3277")
            A(f"v_mul_lo_u32 v{T+2}, v{T+5}, s33")
            A(f"v_lshrrev_b32 v{T+2}, 16, v{T+2}")
            A(f"v_mul_u32_u24 v{T+3}, 20, v{T+2}")
            A(f"v_sub_u32 v{T+5}, v{T+5}, v{T+3}")
            A(f"v_mul_u32_u24 v{T+2}, 3840, v{T+2}")
            A(f"v_lshl_add_u32 v{T+2}, v{T+5}, 4, v{T+2}")
            A(f"v_add_u32 v{T+2}, s37, v{T+2}")
            A(f"v_mov_b32 v{dst+1}, s5")
            A(f"v_add_co_u32 v{dst}, vcc, s4, v{T+2}")
            A("s_nop 1")
            A(f"v_addc_co_u32 v{dst+1}, vcc, 0, v{dst+1}, vcc")
        else:
            A("s_movk_i32 s33, 2731")
            A(f"v_mul_lo_u32 v{T+2}, v{T+5}, s33")
            A(f"v_lshrrev_b32 v{T+2}, 16, v{T+2}")
            A(f"v_mul_u32_u24 v{T+3}, 24, v{T+2}")
            A(f"v_sub_u32 v{T+5}, v{T+5}, v{T+3}")
            A(f"v_lshrrev_b32 v{T+3}, 2, v{T+5}")
            A(f"v_bfe_u32 v{T+4}, v{T+2}, 1, 1")
            A(f"v_xor_b32 v{T+3}, v{T+3}, v{T+4}")
            A(f"v_and_b32 v{T+5}, 3, v{T+5}")
            A(f"v_mul_u32_u24 v{T+2}, {DF * 2}, v{T+2}")
            A(f"v_lshl_add_u32 v{T+2}, v{T+5}, 4, v{T+2}")
            A(f"v_lshrrev_b32 v{T+4}, 1, v{T+3}")
            A(f"v_lshl_add_u32 v{T+2}, v{T+4}, 6, v{T+2}")
            A(f"v_add_u32 v{T+2}, s37, v{T+2}")
            A(f"v_and_b32 v{T+3}, 1, v{T+3}")
            A(f"v_cmp_eq_u32 vcc, 1, v{T+3}")
            A(f"v_mov_b32 v{T+4}, s8")
            A(f"v_mov_b32 v{T+5}, s9")
            A(f"v_mov_b32 v{T+6}, s10")
            A(f"v_mov_b32 v{T+7}, s11")
            A(f"v_cndmask_b32 v{T+4}, v{T+4}, v{T+6}, vcc")
            A(f"v_cndmask_b32 v{T+5}, v{T+5}, v{T+7}, vcc")
            A(f"v_add_co_u32 v{dst}, vcc, v{T+4}, v{T+2}")
            A("s_nop 1")
            A(f"v_addc_co_u32 v{dst+1}, vcc, 0, v{T+5}, vcc")

    def setup(self, A, wadv):
        T = self.T
        lab = A.newlabel("G1_x1")
        lab2 = A.newlabel("G1_x2")
        A(f"v_mov_b32 v{self.TID}, v0")
        A(f"v_and_b32 v{T}, 63, v0")
        A(f"v_lshrrev_b32 v{T+1}, 6, v0")
        A("s_nop 0")
        A(f"v_readfirstlane_b32 s30, v{T+1}")
        A("s_waitcnt lgkmcnt(0)")
        self.xaddr_one(A, self.GA, 30)
        A("s_lshl_b32 s24, s30, 10")
        A("s_mov_b32 s40, 64")
        A("s_mov_b32 s41, 0")
        A(f"s_mov_b32 s44, {wadv}")
        A("s_mov_b32 s45, 0")
        A("s_cmp_lt_u32 s30, 4")
        A(f"s_cbranch_scc0 {lab}")
        A("s_add_u32 s25, s30, 12")
        self.xaddr_one(A, self.GA + 2, 25)
        A("s_lshl_b32 s25, s25, 10")
        A("s_mov_b32 s42, 64")
        A(f"s_branch {lab2}")
        A.label(lab)
        A("s_sub_u32 s25, s30, 4")
        self.waddr_one(A, self.GA + 2, 25)
        A("s_lshl_b32 s25, s25, 10")
        A(f"s_add_u32 s25, s25, {self.XB}")
        A(f"s_mov_b32 s42, {wadv}")
        A.label(lab2)
        A("s_mov_b32 s43, 0")
        A("s_add_u32 s26, s30, 8")
        A(f"s_min_u32 s26, s26, {self.nwi - 1}")
        self.waddr_one(A, self.GA + 4, 26)
        A("s_lshl_b32 s26, s26, 10")
        A(f"s_add_u32 s26, s26, {self.XB}")

    def issue(self, A, st):
        for j in range(3):
            A(f"s_add_u32 m0, s{24+j}, {st * self.STAGE}")
            A("s_nop 0")
            A(f"global_load_lds_dwordx4 {vr(self.GA+2*j, 2)}, off")
            A(f"v_lshl_add_u64 {vr(self.GA+2*j, 2)}, {vr(self.GA+2*j, 2)}, 0, s[{40+2*j}:{41+2*j}]")

    def frag_setup(self, A):
        T = self.T
        if self.kind == 'qkv':
            A("s_and_b32 s31, s30, 7")
            A("s_mov_b32 s32, 0")
        else:
            A("s_and_b32 s31, s30, 3")
            A("s_lshr_b32 s32, s30, 2")
        A(f"v_and_b32 v{T+2}, 31, v{T}")
        A(f"s_mul_i32 s33, s31, {32 * self.TM}")
        A(f"v_add_u32 v{T+2}, s33, v{T+2}")
        A(f"v_lshrrev_b32 v{T+3}, 5, v{T}")
        A(f"v_bfe_u32 v{T+4}, v{T}, 2, 2")
        A(f"v_xor_b32 v{T+3}, v{T+3}, v{T+4}")
        A(f"v_lshlrev_b32 v{T+3}, 4, v{T+3}")
        A(f"v_lshl_add_u32 v{self.AX}, v{T+2}, 6, v{T+3}")
        A(f"v_xor_b32 v{self.AX+1}, 32, v{self.AX}")
        A(f"v_lshrrev_b32 v{T+2}, 5, v{T}")
        A(f"v_lshlrev_b32 v{T+2}, 3, v{T+2}")
        A(f"v_bfe_u32 v{T+3}, v{T}, 2, 2")
        A(f"v_add_u32 v{T+2}, v{T+2}, v{T+3}")
        A(f"v_mul_u32_u24 v{T+2}, {self.RS}, v{T+2}")
        if self.kind == 'glu':
            A(f"v_lshrrev_b32 v{T+3}, 1, v{T+3}")
            A("s_lshl_b32 s33, s32, 1")
            A(f"v_xor_b32 v{T+3}, s33, v{T+3}")
            A(f"v_lshl_add_u32 v{T+2}, v{T+3}, 6, v{T+2}")
        A(f"v_bfe_u32 v{T+3}, v{T}, 4, 1")
        A(f"v_lshl_add_u32 v{T+2}, v{T+3}, 5, v{T+2}")
        A(f"v_and_b32 v{T+3}, 3, v{T}")
        A(f"v_lshl_add_u32 v{T+2}, v{T+3}, 3, v{T+2}")
        A(f"v_add_u32 v{self.AW}, {self.XB}, v{T+2}")
        if self.kind == 'glu':
            A(f"v_xor_b32 v{self.AW+1}, 64, v{self.AW}")

    def read_frags(self, A, st, ks, fs):
        RS = self.RS
        for ti in range(self.TM):
            A(f"ds_read_b128 {vr(self.FX + fs * 4 * self.TM + ti * 4, 4)}, v{self.AX+ks} offset:{st * self.STAGE + ti * 2048}")
        for ci in range(self.TN):
            for t in range(2):
                if self.kind == 'glu':
                    A(f"ds_read_b64_tr_b16 {vr(self.FW + fs * 4 * self.TN + ci * 4 + 2 * t, 2)}, v{self.AW+ci} offset:{st * self.STAGE + (ks * 16 + 4 * t) * RS}")
                else:
                    A(f"ds_read_b64_tr_b16 {vr(self.FW + fs * 4 * self.TN + ci * 4 + 2 * t, 2)}, v{self.AW} offset:{st * self.STAGE + (ks * 16 + 4 * t) * RS + ci * 64}")

    def mfmas(self, A, fs, swapped):
        for ti in range(self.TM):
            for ci in range(self.TN):
                acc = vr(self.acc(ti, ci), 16)
                fx = vr(self.FX + fs * 4 * self.TM + ti * 4, 4)
                fw = vr(self.FW + fs * 4 * self.TN + ci * 4, 4)
                if swapped:
                    A(f"v_mfma_f32_32x32x16_bf16 {acc}, {fw}, {fx}, {acc}")
                else:
                    A(f"v_mfma_f32_32x32x16_bf16 {acc}, {fx}, {fw}, {acc}")

    def mainloop(self, A, swapped, compute=True):
        nkt = 20
        nrd = self.TM + 2 * self.TN
        assert 3 * self.STAGE + self.XB + 20 * self.RS + 64 * 5 < 65536 + self.XB + 65536
        for kt in range(nkt):
            st = kt % NST
            inflight = min(nkt, kt + 3) - kt - 1
            A(f"s_waitcnt vmcnt({inflight * 3})")
            A("s_barrier")
            if compute:
                self.read_frags_big(A, st, 0, 0)
                self.read_frags_big(A, st, 1, 1)
            if kt + 3 < nkt:
                self.issue(A, (kt + 3) % NST)
            if compute:
                A(f"s_waitcnt lgkmcnt({min(nrd, 15)})")
                self.mfmas(A, 0, swapped)
                A("s_waitcnt lgkmcnt(0)")
                self.mfmas(A, 1, swapped)
        A("s_barrier")
        A("s_nop 15")

    def read_frags_big(self, A, st, ks, fs):
        if st < 2:
            self.read_frags(A, st, ks, fs)
            return
        sv = (self.AX, self.AW)
        T = self.T
        self.AX, self.AW = T + 16, T + 18
        self.read_frags(A, st - 2, ks, fs)
        self.AX, self.AW = sv

    def big_setup(self, A):
        T = self.T
        for i in range(2):
            A(f"v_add_u32 v{T+16+i}, {2 * self.STAGE}, v{self.AX+i}")
            A(f"v_add_u32 v{T+18+i}, {2 * self.STAGE}, v{self.AW+i}")


def gen_gemm1(A):
    name = "gemm1_kernel"
    NWG = 240
    kernel_begin(A, name)
    A(f"s_cmp_ge_u32 s2, {NWG}")
    A("s_cbranch_scc1 G1_done")
    A("s_load_dwordx2 s[4:5], s[0:1], 8")
    A("s_load_dwordx4 s[8:11], s[0:1], 32")
    A("s_load_dwordx2 s[6:7], s[0:1], 72")
    A("s_and_b32 s34, s2, 7")
    A("s_mul_i32 s34, s34, 30")
    A("s_lshr_b32 s35, s2, 3")
    A("s_add_u32 s35, s35, s34")
    A("s_and_b32 s34, s35, 7")
    A("s_lshr_b32 s35, s35, 3")
    A("s_lshl_b32 s36, s34, 8")
    A("s_cmp_ge_u32 s35, 12")
    A("s_cbranch_scc1 G1_glu")
    G = GemmB('qkv')
    T = G.T
    A("s_mul_i32 s37, s35, 320")
    G.setup(A, 32 * 3840)
    for st in range(3):
        G.issue(A, st)
    G.frag_setup(A)
    G.big_setup(A)
    for r in range(80):
        A(f"v_mov_b32 v{r}, 0")
    A("s_cmp_ge_u32 s30, 8")
    A("s_cbranch_scc1 G1_helper")
    A("s_cmp_ge_u32 s35, 8")
    A("s_cbranch_scc1 G1_v")
    G.mainloop(A, True)
    A("s_cmp_ge_u32 s35, 4")
    A(f"s_mov_b32 s38, {WS_Q}")
    A(f"s_cselect_b32 s38, {WS_K}, s38")
    A(f"s_mov_b32 s39, 0x{fbits(CSCALE):08x}")
    A(f"s_cselect_b32 s39, 1.0, s39")
    A("s_cselect_b32 s48, 3, 0")
    A("s_cselect_b32 s49, 0x3f803f80, 0")
    A("s_cselect_b32 s50, 0x3f80, 0")
    A(f"v_and_b32 v{T+2}, 31, v{T}")
    A("s_lshl_b32 s37, s30, 5")
    A(f"v_add_u32 v{T+2}, s37, v{T+2}")
    A(f"v_bfe_u32 v{T+3}, v{T+2}, 2, 2")
    A(f"v_and_b32 v{T+3}, s48, v{T+3}")
    A(f"v_lshlrev_b32 v{T+2}, 6, v{T+2}")
    for c in range(4):
        A(f"v_xor_b32 v{T+4}, {c}, v{T+3}")
        A(f"v_lshl_add_u32 v{G.FX+c}, v{T+4}, 4, v{T+2}")
        A(f"v_add_u32 v{G.FX+4+c}, 0x10000, v{G.FX+c}")
    A(f"v_mov_b32 v{T+8}, s49")
    A(f"v_mov_b32 v{T+9}, s50")
    for r in range(4):
        A(f"v_mov_b32 v{T+12+r}, 0")
    A("s_mov_b64 s[52:53], exec")
    A("s_mov_b32 s54, -1")
    A("s_mov_b32 s55, 0")
    A("s_mov_b32 s56, 0")
    A("s_mov_b32 s57, -1")
    for ci in range(5):
        for q4 in range(4):
            a = G.acc(0, ci) + 4 * q4
            for j in range(4):
                A(f"v_mul_f32 v{a+j}, s39, v{a+j}")
            A(f"v_cvt_pk_bf16_f32 v{T+6}, v{a}, v{a+1}")
            A(f"v_cvt_pk_bf16_f32 v{T+7}, v{a+2}, v{a+3}")
            for hh in range(2):
                col = ci * 32 + 8 * q4 + 4 * hh
                head, d = col // 20, col % 20
                hb = G.FX + (4 if head >= 4 else 0)
                ho = (head & 3) * 16384
                A(f"s_mov_b64 exec, s[{54 + 2 * hh}:{55 + 2 * hh}]")
                if d == 16:
                    A(f"ds_write_b128 v{hb+2}, {vr(T+6, 4)} offset:{ho}")
                    A(f"ds_write_b128 v{hb+3}, {vr(T+12, 4)} offset:{ho}")
                else:
                    A(f"ds_write_b64 v{hb+(d >> 3)}, {vr(T+6, 2)} offset:{ho + ((d >> 2) & 1) * 8}")
            A("s_mov_b64 exec, s[52:53]")
    A("s_branch G1_copyout")
    A.label("G1_helper")
    G.mainloop(A, True, compute=False)
    A("s_barrier")
    A("s_branch G1_done")
    A.label("G1_v")
    G.mainloop(A, False)
    A(f"s_mov_b32 s38, {WS_V}")
    A(f"v_and_b32 v{T+3}, 31, v{T}")
    A(f"v_lshrrev_b32 v{T+2}, 5, v{T}")
    A("s_lshl_b32 s37, s30, 11")
    A("s_movk_i32 s39, 3277")
    for ci in range(5):
        A(f"v_add_u32 v{T+4}, {ci * 32}, v{T+3}")
        A(f"v_mul_lo_u32 v{T+5}, v{T+4}, s39")
        A(f"v_lshrrev_b32 v{T+5}, 16, v{T+5}")
        A(f"v_mul_u32_u24 v{T+6}, 20, v{T+5}")
        A(f"v_sub_u32 v{T+6}, v{T+4}, v{T+6}")
        A(f"v_lshlrev_b32 v{T+5}, 14, v{T+5}")
        A(f"v_add_u32 v{T+5}, s37, v{T+5}")
        A(f"v_bfe_u32 v{T+7}, v{T+6}, 2, 2")
        A(f"v_xor_b32 v{T+7}, v{T+7}, v{T+2}")
        A(f"v_lshlrev_b32 v{T+7}, 4, v{T+7}")
        A(f"v_lshl_add_u32 v{T+7}, v{T+6}, 6, v{T+7}")
        A(f"v_add_u32 v{T+7}, v{T+7}, v{T+5}")
        A(f"v_xor_b32 v{T+8}, 32, v{T+7}")
        A(f"v_add_u32 v{T+9}, 12, v{T+6}")
        A(f"v_bfe_u32 v{T+10}, v{T+9}, 2, 2")
        A(f"v_xor_b32 v{T+10}, v{T+10}, v{T+2}")
        A(f"v_lshlrev_b32 v{T+10}, 4, v{T+10}")
        A(f"v_lshl_add_u32 v{T+10}, v{T+9}, 6, v{T+10}")
        A(f"v_add_u32 v{T+10}, v{T+10}, v{T+5}")
        A(f"v_xor_b32 v{T+11}, 32, v{T+10}")
        A(f"v_cmp_eq_u32 vcc, 8, v{T+6}")
        A(f"v_mov_b32 v{T+12}, 0x3f803f80")
        A("s_nop 0")
        A(f"v_cndmask_b32 v{T+16}, 0, v{T+12}, vcc")
        A(f"v_mov_b32 v{T+17}, v{T+16}")
        A(f"v_mov_b32 v{T+18}, v{T+16}")
        A(f"v_mov_b32 v{T+19}, v{T+16}")
        A(f"v_cmp_le_u32 s[52:53], 8, v{T+6}")
        a = G.acc(0, ci)
        for s_ in range(2):
            for j in range(4):
                A(f"v_cvt_pk_bf16_f32 v{T+12+j}, v{a + 8 * s_ + 2 * j}, v{a + 8 * s_ + 2 * j + 1}")
            A(f"ds_write_b128 v{T+7+s_}, {vr(T+12, 4)}")
            A("s_nop 1")
        A("s_mov_b64 s[54:55], exec")
        A("s_and_b64 exec, exec, s[52:53]")
        A(f"ds_write_b128 v{T+10}, {vr(T+16, 4)}")
        A(f"ds_write_b128 v{T+11}, {vr(T+16, 4)}")
        A("s_mov_b64 exec, s[54:55]")
        A("s_nop 1")
    A.label("G1_copyout")
    A("s_add_u32 s44, s6, s38")
    A("s_addc_u32 s45, s7, 0")
    A(f"s_mov_b32 s46, {4 << 20}")
    A("s_mov_b32 s47, 0x00020000")
    A(f"v_lshlrev_b32 v{T+2}, 4, v{G.TID}")
    A(f"v_add_u32 v{T+4}, 0x10000, v{T+2}")
    A("s_and_b32 s37, s35, 3")
    A("s_lshl_b32 s37, s37, 20")
    A("s_lshl_b32 s39, s36, 6")
    A("s_add_u32 s37, s37, s39")
    A(f"v_add_u32 v{T+3}, s37, v{T+2}")
    A("s_waitcnt lgkmcnt(0)")
    A("s_barrier")
    for i in range(16):
        A(f"ds_read_b128 {vr(4 * i, 4)}, v{T+2 if i < 8 else T+4} offset:{(i & 7) * 8192}")
    for i in range(16):
        A(f"s_mov_b32 s39, {(i >> 1) * 131072 + (i & 1) * 8192}")
        A(f"s_waitcnt lgkmcnt({15 - i})")
        A(f"buffer_store_dwordx4 {vr(4 * i, 4)}, v{T+3}, s[44:47], s39 offen")
    A("s_branch G1_done")
    A.label("G1_glu")
    G = GemmB('glu')
    T = G.T
    A("s_sub_u32 s35, s35, 12")
    A("s_mul_i32 s37, s35, 192")
    G.setup(A, 32 * DF * 2)
    for st in range(3):
        G.issue(A, st)
    G.frag_setup(A)
    G.big_setup(A)
    for r in range(64):
        A(f"v_mov_b32 v{r}, 0")
    G.mainloop(A, True)
    IS = 208
    A(f"v_and_b32 v{T+2}, 31, v{T}")
    A("s_lshl_b32 s39, s31, 6")
    A(f"v_add_u32 v{T+2}, s39, v{T+2}")
    A(f"v_mul_u32_u24 v{T+2}, {IS}, v{T+2}")
    A("s_lshl_b32 s39, s32, 6")
    A(f"v_lshrrev_b32 v{T+3}, 5, v{T}")
    A(f"v_lshlrev_b32 v{T+3}, 3, v{T+3}")
    A(f"v_add3_u32 v{T+2}, v{T+2}, v{T+3}, s39")
    A("s_mov_b32 s38, 0x3d372713")
    A("s_mov_b32 s39, 0xc0135761")
    for ti in range(2):
        g = G.acc(ti, 0)
        u = G.acc(ti, 1)
        for q4 in range(4):
            for j in range(4):
                r = 4 * q4 + j
                t0 = T + 8 + j
                A(f"v_mul_f32 v{t0}, v{g + r}, v{g + r}")
                A(f"v_fma_f32 v{t0}, v{t0}, s38, 1.0")
                A(f"v_mul_f32 v{t0}, v{t0}, v{g + r}")
                A(f"v_mul_f32 v{t0}, s39, v{t0}")
                A(f"v_exp_f32 v{t0}, v{t0}")
                A(f"v_mul_f32 v{g + r}, v{g + r}, v{u + r}")
            for j in range(4):
                t0 = T + 8 + j
                A(f"v_add_f32 v{t0}, 1.0, v{t0}")
                A(f"v_rcp_f32 v{t0}, v{t0}")
            A("s_nop 0")
            for j in range(4):
                r = 4 * q4 + j
                t0 = T + 8 + j
                A(f"v_mul_f32 v{t0}, v{g + r}, v{t0}")
            A(f"v_cvt_pk_bf16_f32 v{T+12}, v{T+8}, v{T+9}")
            A(f"v_cvt_pk_bf16_f32 v{T+13}, v{T+10}, v{T+11}")
            A(f"ds_write_b64 v{T+2}, {vr(T+12, 2)} offset:{ti * 32 * IS + q4 * 16}")
    A(f"s_add_u32 s44, s6, {WS_H}")
    A("s_addc_u32 s45, s7, 0")
    A(f"s_mov_b32 s46, {S * DF * 2}")
    A("s_mov_b32 s47, 0x00020000")
    A("s_movk_i32 s33, 5462")
    A(f"v_mul_lo_u32 v{T+2}, v{G.TID}, s33")
    A(f"v_lshrrev_b32 v{T+2}, 16, v{T+2}")
    A(f"v_mul_u32_u24 v{T+3}, 12, v{T+2}")
    A(f"v_sub_u32 v{T+3}, v{G.TID}, v{T+3}")
    A(f"v_lshlrev_b32 v{T+3}, 4, v{T+3}")
    A(f"v_mul_u32_u24 v{T+4}, {IS}, v{T+2}")
    A(f"v_add_u32 v{T+4}, v{T+4}, v{T+3}")
    A(f"v_add_u32 v{T+2}, s36, v{T+2}")
    A(f"v_mul_u32_u24 v{T+2}, {DF * 2}, v{T+2}")
    A(f"v_add3_u32 v{T+2}, v{T+2}, v{T+3}, s37")
    A("s_waitcnt lgkmcnt(0)")
    A("s_barrier")
    for i in range(4):
        A(f"ds_read_b128 {vr(4 * i, 4)}, v{T+4} offset:{i * 64 * IS}")
    for i in range(4):
        A(f"s_mov_b32 s39, {i * 64 * DF * 2}")
        A(f"s_waitcnt lgkmcnt({3 - i})")
        A(f"buffer_store_dwordx4 {vr(4 * i, 4)}, v{T+2}, s[44:47], s39 offen")
    A.label("G1_done")
    A("s_endpgm")
    for q in range(768):
        assert (q * 2731) >> 16 == q // 24 and (q * 5462) >> 16 == q // 12
    return kernel_desc(name, max(GemmB('qkv').NV, G.NV)), 131072, NWG


def gen_gemm2(A, TM, TN):
    name = "gemm2_kernel"
    G = Gemm(TM, TN)
    T = G.T
    ntt = S // G.BM
    nct = D // G.BN
    kernel_begin(A, name)
    A(f"s_cmp_ge_u32 s2, {ntt * nct}")
    A("s_cbranch_scc1 G2_done")
    A("s_load_dwordx2 s[4:5], s[0:1], 16")
    A("s_load_dwordx2 s[8:9], s[0:1], 48")
    A("s_load_dwordx2 s[10:11], s[0:1], 0")
    A("s_load_dwordx2 s[12:13], s[0:1], 56")
    A("s_load_dwordx2 s[6:7], s[0:1], 72")
    A("s_and_b32 s34, s2, 7")
    A("s_lshr_b32 s35, s2, 3")
    A(f"s_mul_i32 s33, s34, {ntt // 8}")
    A(f"s_and_b32 s34, s35, {ntt // 8 - 1}")
    A("s_add_u32 s34, s34, s33")
    A(f"s_lshr_b32 s35, s35, {(ntt // 8).bit_length() - 1}")
    G.setup(A)
    A(f"s_mul_i32 s36, s34, {G.BM}")
    A(f"s_mul_i32 s37, s35, {G.BN * 2}")
    A("s_waitcnt lgkmcnt(0)")
    A(f"s_add_u32 s14, s6, {WS_O}")
    A("s_addc_u32 s15, s7, 0")
    A(f"s_add_u32 s16, s6, {WS_H}")
    A("s_addc_u32 s17, s7, 0")
    A("s_mov_b32 s40, 64")
    A("s_mov_b32 s41, 0")
    A(f"s_mov_b32 s42, {32 * 1280}")
    A("s_mov_b32 s43, 0")
    G.xaddr(A, 14, 1280, 36)
    G.waddr_plain(A, 4, 1280, 37)
    G.fin_setup(A)
    G.mainloop(A, 20, True)
    IS = G.BN * 4 + 16
    A(f"v_and_b32 v{T+2}, 31, v{T}")
    A(f"s_mul_i32 s39, s31, {32 * TM}")
    A(f"v_add_u32 v{T+2}, s39, v{T+2}")
    A(f"v_mul_u32_u24 v{T+2}, {IS}, v{T+2}")
    A(f"s_mul_i32 s39, s32, {128 * TN}")
    A(f"v_lshrrev_b32 v{T+3}, 5, v{T}")
    A(f"v_lshlrev_b32 v{T+3}, 4, v{T+3}")
    A(f"v_add3_u32 v{T+2}, v{T+2}, v{T+3}, s39")
    for ti in range(TM):
        for ci in range(TN):
            for q4 in range(4):
                A(f"ds_write_b128 v{T+2}, {vr(G.acc(ti, ci) + 4 * q4, 4)} offset:{ti * 32 * IS + ci * 128 + q4 * 32}")
    A("s_mov_b32 s44, s10")
    A("s_mov_b32 s45, s11")
    A(f"s_mov_b32 s46, {S * D * 2}")
    A("s_mov_b32 s47, 0x00020000")
    A("s_mov_b32 s48, s12")
    A("s_mov_b32 s49, s13")
    A(f"s_mov_b32 s50, {S * D * 2}")
    A("s_mov_b32 s51, 0x00020000")
    cpr = G.BN // 8
    rpi = 256 // cpr
    nit = G.BM // rpi
    A(f"v_lshrrev_b32 v{T+2}, {cpr.bit_length() - 1}, v{G.TID}")
    A(f"v_and_b32 v{T+3}, {cpr - 1}, v{G.TID}")
    A(f"v_lshlrev_b32 v{T+5}, 5, v{T+3}")
    A(f"v_mul_u32_u24 v{T+4}, {IS}, v{T+2}")
    A(f"v_add_u32 v{T+4}, v{T+4}, v{T+5}")
    A(f"v_add_u32 v{T+2}, s36, v{T+2}")
    A(f"v_mul_u32_u24 v{T+2}, 1280, v{T+2}")
    A(f"v_lshlrev_b32 v{T+3}, 4, v{T+3}")
    A(f"v_add3_u32 v{T+2}, v{T+2}, v{T+3}, s37")
    A(f"s_add_u32 s52, s6, {WS_P}")
    A("s_addc_u32 s53, s7, 0")
    A(f"s_mov_b32 s54, {3 * S * D * 4}")
    A("s_mov_b32 s55, 0x00020000")
    A(f"v_lshlrev_b32 v{T+8}, 1, v{T+2}")
    for i in range(nit):
        A(f"s_mov_b32 s39, {i * rpi * 1280}")
        A(f"s_mov_b32 s38, {i * rpi * 2560}")
        A(f"buffer_load_dwordx4 {vr(48 + 4 * i, 4)}, v{T+2}, s[44:47], s39 offen")
        for p in range(3):
            A(f"s_mov_b32 s38, {i * rpi * 2560 + p * S * D * 4}")
            A(f"buffer_load_dwordx4 {vr(96 + 24 * i + 8 * p, 4)}, v{T+8}, s[52:55], s38 offen")
            A(f"buffer_load_dwordx4 {vr(100 + 24 * i + 8 * p, 4)}, v{T+8}, s[52:55], s38 offen offset:16")
    A("s_waitcnt lgkmcnt(0)")
    A("s_barrier")
    for i in range(nit):
        A(f"ds_read_b128 {vr(8 * i, 4)}, v{T+4} offset:{i * rpi * IS}")
        A(f"ds_read_b128 {vr(8 * i + 4, 4)}, v{T+4} offset:{i * rpi * IS + 16}")
    for i in range(nit):
        A(f"s_waitcnt vmcnt({7 * (nit - 1 - i) + i}) lgkmcnt({2 * (nit - 1 - i)})")
        for j in range(4):
            xr = 48 + 4 * i + j
            A(f"v_lshlrev_b32 v{T+6}, 16, v{xr}")
            A(f"v_and_b32 v{T+7}, 0xffff0000, v{xr}")
            for p in range(3):
                A(f"v_add_f32 v{8 * i + 2 * j}, v{8 * i + 2 * j}, v{96 + 24 * i + 8 * p + 2 * j}")
                A(f"v_add_f32 v{8 * i + 2 * j + 1}, v{8 * i + 2 * j + 1}, v{96 + 24 * i + 8 * p + 2 * j + 1}")
            A(f"v_add_f32 v{T+6}, v{T+6}, v{8 * i + 2 * j}")
            A(f"v_add_f32 v{T+7}, v{T+7}, v{8 * i + 2 * j + 1}")
            A(f"v_cvt_pk_bf16_f32 v{xr}, v{T+6}, v{T+7}")
        A(f"s_mov_b32 s39, {i * rpi * 1280}")
        A(f"buffer_store_dwordx4 {vr(48 + 4 * i, 4)}, v{T+2}, s[48:51], s39 offen")
    A.label("G2_done")
    A("s_endpgm")
    return kernel_desc(name, max(G.NV, 96 + 24 * nit)), G.LDS, ntt * nct


ACH = 128
ABUF = 16384
LDS_ATT = 73728
NGW = 240


def gen_attn(A):
    name = "attn_kernel"
    kernel_begin(A, name)
    A0 = A

    class F:
        inloop = False

        def __call__(self, s):
            if self.inloop:
                if 'AT_NOMFMA' in FL and s.startswith('v_mfma'):
                    return
                if 'AT_NODS' in FL and s.startswith('ds_read'):
                    return
                if 'AT_NOMAX' in FL and (s.startswith('v_max3') or s.startswith('v_permlane') or s.startswith('s_nop 1')):
                    return
                if 'AT_NOSYNC' in FL and (s.startswith('s_barrier') or s.startswith('buffer_load') or s.startswith('s_waitcnt vmcnt')):
                    return
                if 'AT_NOCVT' in FL and s.startswith('v_cvt_pk'):
                    return
            A0(s)

        def label(self, l):
            A0.label(l)
            if l == 'AT_loop':
                self.inloop = True

        def newlabel(self, p):
            return A0.newlabel(p)

        def raw(self, s):
            A0.raw(s)
    A = F()
    O = 0
    SS = (16, 32)
    QF = 48
    KF = 56
    VF = 64
    PF = 72
    AC0, AC1, AN0, AN1 = 80, 81, 82, 83
    M = 84
    FLOOR = 85
    GO = 86
    LN_ = 87
    B0, B1 = 88, 89
    THR = 90
    T = 92
    A(f"s_cmp_ge_u32 s2, {256 + NGW}")
    A("s_cbranch_scc1 AT_done")
    A("s_cmp_ge_u32 s2, 256")
    A("s_cbranch_scc1 AT_gemm")
    A("s_load_dwordx2 s[6:7], s[0:1], 72")
    A("s_and_b32 s34, s2, 31")
    A("s_lshr_b32 s35, s2, 5")
    A(f"v_and_b32 v{LN_}, 63, v0")
    A(f"v_lshrrev_b32 v{T+1}, 6, v0")
    A("s_nop 0")
    A(f"v_readfirstlane_b32 s30, v{T+1}")
    A("s_waitcnt lgkmcnt(0)")
    A("s_lshl_b32 s36, s34, 17")
    for (sd, off) in ((8, WS_Q), (12, WS_K), (16, WS_V)):
        A(f"s_add_u32 s{sd}, s6, {off}")
        A(f"s_addc_u32 s{sd+1}, s7, 0")
        A(f"s_add_u32 s{sd}, s{sd}, s36")
        A(f"s_addc_u32 s{sd+1}, s{sd+1}, 0")
        A(f"s_mov_b32 s{sd+2}, {HEADB}")
        A(f"s_mov_b32 s{sd+3}, 0x00020000")
    A(f"s_add_u32 s20, s6, {WS_O}")
    A("s_addc_u32 s21, s7, 0")
    A(f"s_mov_b32 s22, {S * D * 2}")
    A("s_mov_b32 s23, 0x00020000")
    A("s_lshl_b32 s31, s30, 10")
    A(f"v_lshlrev_b32 v{GO}, 4, v{LN_}")
    A(f"v_add_u32 v{GO}, s31, v{GO}")

    def dma(buf_s, chunk_s):
        A(f"s_add_u32 m0, s{buf_s}, s31")
        A("s_nop 0")
        A(f"buffer_load_dwordx4 v{GO}, s[12:15], s{chunk_s} offen lds")
        A(f"s_add_u32 m0, m0, 8192")
        A("s_nop 0")
        A(f"buffer_load_dwordx4 v{GO}, s[16:19], s{chunk_s} offen lds")

    A(f"v_and_b32 v{T+2}, 31, v{LN_}")
    A(f"v_lshrrev_b32 v{T+3}, 5, v{LN_}")
    A("s_lshl_b32 s36, s35, 8")
    A("s_lshl_b32 s37, s30, 5")
    A("s_add_u32 s36, s36, s37")
    A(f"v_add_u32 v{T+4}, s36, v{T+2}")
    A(f"v_lshlrev_b32 v{T+4}, 6, v{T+4}")
    A(f"v_lshl_add_u32 v{T+4}, v{T+3}, 4, v{T+4}")
    A(f"buffer_load_dwordx4 {vr(QF, 4)}, v{T+4}, s[8:11], 0 offen")
    A(f"buffer_load_dwordx4 {vr(QF+4, 4)}, v{T+4}, s[8:11], 0 offen offset:32")
    A("s_mov_b32 s44, 0")
    A(f"s_mov_b32 s45, {ABUF}")
    A(f"s_mov_b32 s46, {2 * ABUF}")
    A("s_mov_b32 s47, 0")
    dma(44, 47)
    A("s_movk_i32 s47, 8192")
    dma(45, 47)
    A("s_movk_i32 s47, 16384")
    A(f"v_bfe_u32 v{T+4}, v{LN_}, 2, 2")
    A(f"v_xor_b32 v{T+5}, v{T+3}, v{T+4}")
    A(f"v_lshlrev_b32 v{T+5}, 4, v{T+5}")
    A(f"v_lshl_add_u32 v{B0}, v{T+2}, 6, v{T+5}")
    A(f"v_xor_b32 v{B1}, 32, v{B0}")
    for r in range(16):
        A(f"v_mov_b32 v{O+r}, 0")
    A(f"v_mov_b32 v{M}, 0")
    A(f"v_mov_b32 v{FLOOR}, 0xff7fffff")
    A(f"v_mov_b32 v{THR}, 0xff7fffff")
    A(f"v_cmp_gt_u32 s[48:49], 32, v{LN_}")
    A("s_mov_b32 s40, 0")
    A("s_waitcnt vmcnt(2)")
    A("s_barrier")
    A(f"v_mov_b32 v{AC0}, v{B0}")
    A(f"v_mov_b32 v{AC1}, v{B1}")
    A(f"v_add_u32 v{AN0}, s45, v{B0}")
    A(f"v_add_u32 v{AN1}, s45, v{B1}")
    A(f"ds_read_b128 {vr(KF, 4)}, v{AC0}")
    A(f"ds_read_b128 {vr(KF+4, 4)}, v{AC1}")
    for j in range(8):
        A(f"v_mov_b32 v{PF+j}, 0")
        A(f"v_mov_b32 v{VF+j}, 0")
    A("s_waitcnt lgkmcnt(0)")
    A(f"v_mfma_f32_32x32x16_bf16 {vr(SS[0], 16)}, {vr(KF, 4)}, {vr(QF, 4)}, 0")
    A(f"v_mfma_f32_32x32x16_bf16 {vr(SS[0], 16)}, {vr(KF+4, 4)}, {vr(QF+4, 4)}, {vr(SS[0], 16)}")
    A(f"ds_read_b128 {vr(KF, 4)}, v{AC0} offset:2048")
    A(f"ds_read_b128 {vr(KF+4, 4)}, v{AC1} offset:2048")
    A("s_nop 15")
    A.label("AT_loop")
    for tl in range(4):
        SC, SN = SS[tl & 1], SS[(tl & 1) ^ 1]
        lab = A.newlabel("AT_nors")
        if tl == 1:
            A("s_waitcnt vmcnt(0)")
            A("s_barrier")
            A("s_cmp_lt_u32 s40, 14")
            lab2 = A.newlabel("AT_nodma")
            A(f"s_cbranch_scc0 {lab2}")
            dma(46, 47)
            A("s_add_u32 s47, s47, 8192")
            A.label(lab2)
        A("s_waitcnt lgkmcnt(2)")
        A(f"v_mfma_f32_32x32x16_bf16 {vr(O, 16)}, {vr(VF, 4)}, {vr(PF, 4)}, {vr(O, 16)}")
        A(f"v_max3_f32 v{T+2}, v{SC}, v{SC+1}, v{SC+2}")
        A(f"v_max3_f32 v{T+3}, v{SC+3}, v{SC+4}, v{SC+5}")
        A(f"v_max3_f32 v{T+2}, v{T+2}, v{SC+6}, v{SC+7}")
        A(f"v_max3_f32 v{T+3}, v{T+3}, v{SC+8}, v{SC+9}")
        A(f"v_max3_f32 v{T+2}, v{T+2}, v{SC+10}, v{SC+11}")
        A(f"v_max3_f32 v{T+3}, v{T+3}, v{SC+12}, v{SC+13}")
        A(f"v_mfma_f32_32x32x16_bf16 {vr(O, 16)}, {vr(VF+4, 4)}, {vr(PF+4, 4)}, {vr(O, 16)}")
        A(f"v_max3_f32 v{T+2}, v{T+2}, v{SC+14}, v{SC+15}")
        A(f"v_max_f32 v{T+2}, v{T+2}, v{T+3}")
        A(f"v_mov_b32 v{T+3}, v{T+2}")
        A("s_nop 1")
        A(f"v_permlane32_swap_b32 v{T+2}, v{T+3}")
        A("s_nop 1")
        A(f"v_max_f32 v{T+2}, v{T+2}, v{T+3}")
        A(f"v_cmp_gt_f32 vcc, v{T+2}, v{THR}")
        A(f"s_cbranch_vccz {lab}")
        A(f"v_max_f32 v{T+2}, v{T+2}, v{FLOOR}")
        A(f"v_mov_b32 v{FLOOR}, 0")
        A(f"v_mov_b32 v{THR}, 0x41000000")
        A(f"v_add_f32 v{M}, v{M}, v{T+2}")
        A(f"v_min_f32 v{T+3}, 0, v{T+2}")
        A(f"v_sub_f32 v{T+3}, v{T+3}, v{T+2}")
        A(f"v_exp_f32 v{T+3}, v{T+3}")
        for r in range(16):
            A(f"v_sub_f32 v{SC+r}, v{SC+r}, v{T+2}")
        A(f"v_sub_f32 v{T+4}, 0, v{M}")
        A(f"v_cvt_pk_bf16_f32 v{T+5}, v{T+4}, v{T+4}")
        A(f"v_and_b32 v{T+5}, 0xffff0000, v{T+5}")
        A(f"v_sub_f32 v{T+4}, v{T+4}, v{T+5}")
        A(f"v_cvt_pk_bf16_f32 v{T+6}, v{T+4}, v{T+4}")
        A(f"v_and_b32 v{T+6}, 0xffff0000, v{T+6}")
        A(f"v_sub_f32 v{T+4}, v{T+4}, v{T+6}")
        A(f"v_cvt_pk_bf16_f32 v{T+4}, v{T+4}, v{T+4}")
        A(f"v_and_b32 v{T+4}, 0xffff, v{T+4}")
        A(f"v_lshrrev_b32 v{T+5}, 16, v{T+5}")
        A(f"v_or_b32 v{T+5}, v{T+5}, v{T+6}")
        A(f"v_cndmask_b32 v{QF+6}, 0, v{T+5}, s[48:49]")
        A(f"v_cndmask_b32 v{QF+7}, 0, v{T+4}, s[48:49]")
        A("s_nop 15")
        for r in range(12):
            A(f"v_mul_f32 v{O+r}, v{O+r}, v{T+3}")
        A.label(lab)
        A(f"ds_read_b128 {vr(VF, 4)}, v{AC0} offset:{8192 + tl * 2048}")
        A(f"ds_read_b128 {vr(VF+4, 4)}, v{AC1} offset:{8192 + tl * 2048}")
        A("s_waitcnt lgkmcnt(2)")
        A(f"v_mfma_f32_32x32x16_bf16 {vr(SN, 16)}, {vr(KF, 4)}, {vr(QF, 4)}, 0")
        for r in range(0, 6):
            if 'NOEXP' not in FL:
                A(f"v_exp_f32 v{SC+r}, v{SC+r}")
        A(f"v_mfma_f32_32x32x16_bf16 {vr(SN, 16)}, {vr(KF+4, 4)}, {vr(QF+4, 4)}, {vr(SN, 16)}")
        for r in range(6, 12):
            if 'NOEXP' not in FL:
                A(f"v_exp_f32 v{SC+r}, v{SC+r}")
        for j in range(3):
            A(f"v_cvt_pk_bf16_f32 v{PF+j}, v{SC+2*j}, v{SC+2*j+1}")
        if tl + 2 < 4:
            A(f"ds_read_b128 {vr(KF, 4)}, v{AC0} offset:{(tl + 2) * 2048}")
            A(f"ds_read_b128 {vr(KF+4, 4)}, v{AC1} offset:{(tl + 2) * 2048}")
        else:
            A(f"ds_read_b128 {vr(KF, 4)}, v{AN0} offset:{(tl - 2) * 2048}")
            A(f"ds_read_b128 {vr(KF+4, 4)}, v{AN1} offset:{(tl - 2) * 2048}")
        for r in range(12, 16):
            if 'NOEXP' not in FL:
                A(f"v_exp_f32 v{SC+r}, v{SC+r}")
        for j in range(3, 8):
            A(f"v_cvt_pk_bf16_f32 v{PF+j}, v{SC+2*j}, v{SC+2*j+1}")
        A("s_nop 0")
    A("s_mov_b32 s43, s44")
    A("s_mov_b32 s44, s45")
    A("s_mov_b32 s45, s46")
    A("s_mov_b32 s46, s43")
    A(f"v_mov_b32 v{AC0}, v{AN0}")
    A(f"v_mov_b32 v{AC1}, v{AN1}")
    A(f"v_add_u32 v{AN0}, s45, v{B0}")
    A(f"v_add_u32 v{AN1}, s45, v{B1}")
    A("s_add_u32 s40, s40, 1")
    A("s_cmp_lt_u32 s40, 16")
    A("s_cbranch_scc1 AT_loop")
    A.inloop = False
    A("s_waitcnt lgkmcnt(0)")
    A(f"v_mfma_f32_32x32x16_bf16 {vr(O, 16)}, {vr(VF, 4)}, {vr(PF, 4)}, {vr(O, 16)}")
    A(f"v_mfma_f32_32x32x16_bf16 {vr(O, 16)}, {vr(VF+4, 4)}, {vr(PF+4, 4)}, {vr(O, 16)}")
    A("s_nop 15")
    A("s_nop 3")
    A(f"v_mov_b32 v{T+2}, v{O+8}")
    A(f"v_mov_b32 v{T+3}, v{O+8}")
    A("s_nop 1")
    A(f"v_permlane32_swap_b32 v{T+2}, v{T+3}")
    A("s_nop 1")
    A(f"v_cndmask_b32 v{T+2}, v{O+8}, v{T+3}, s[48:49]")
    A(f"v_rcp_f32 v{T+2}, v{T+2}")
    A("s_nop 0")
    for r in range(12):
        A(f"v_mul_f32 v{O+r}, v{O+r}, v{T+2}")
    A(f"v_and_b32 v{T+3}, 31, v{LN_}")
    A(f"v_add_u32 v{T+3}, s36, v{T+3}")
    A(f"v_mul_u32_u24 v{T+3}, 1280, v{T+3}")
    A("s_mul_i32 s37, s34, 40")
    A(f"v_lshrrev_b32 v{T+4}, 5, v{LN_}")
    A(f"v_lshlrev_b32 v{T+4}, 3, v{T+4}")
    A(f"v_add3_u32 v{T+3}, v{T+3}, v{T+4}, s37")
    for g in range(3):
        A(f"v_cvt_pk_bf16_f32 v{T+4}, v{O+4*g}, v{O+4*g+1}")
        A(f"v_cvt_pk_bf16_f32 v{T+5}, v{O+4*g+2}, v{O+4*g+3}")
        if g == 2:
            A("s_mov_b64 exec, s[48:49]")
        A(f"buffer_store_dwordx2 {vr(T+4, 2)}, v{T+3}, s[20:23], 0 offen offset:{16 * g}")
    A("s_branch AT_done")
    A.label("AT_gemm")
    G = Gemm(1, 2, 4, 2)
    T = G.T
    A("s_load_dwordx2 s[4:5], s[0:1], 48")
    A("s_load_dwordx2 s[6:7], s[0:1], 72")
    A("s_sub_u32 s2, s2, 256")
    A("s_and_b32 s34, s2, 15")
    A("s_lshr_b32 s35, s2, 4")
    A("s_mul_i32 s58, s35, 52")
    A("s_lshr_b32 s58, s58, 8")
    A("s_mul_i32 s33, s58, 5")
    A("s_sub_u32 s35, s35, s33")
    G.setup(A)
    A("s_lshl_b32 s36, s34, 7")
    A("s_lshl_b32 s37, s35, 8")
    A("s_waitcnt lgkmcnt(0)")
    A(f"s_add_u32 s16, s6, {WS_H}")
    A("s_addc_u32 s17, s7, 0")
    A(f"s_mul_i32 s33, s58, {18 * 64}")
    A("s_add_u32 s16, s16, s33")
    A("s_addc_u32 s17, s17, 0")
    A(f"s_mul_i32 s33, s58, {18 * 32 * 1280}")
    A("s_add_u32 s4, s4, s33")
    A("s_addc_u32 s5, s5, 0")
    A("s_mov_b32 s40, 64")
    A("s_mov_b32 s41, 0")
    A(f"s_mov_b32 s42, {32 * 1280}")
    A("s_mov_b32 s43, 0")
    G.xaddr(A, 16, DF * 2, 36)
    G.waddr_plain(A, 4, 1280, 37)
    G.fin_setup(A)
    G.mainloop(A, 18, True)
    IS = 528
    A(f"v_and_b32 v{T+2}, 31, v{T}")
    A("s_lshl_b32 s39, s31, 5")
    A(f"v_add_u32 v{T+2}, s39, v{T+2}")
    A(f"v_mul_u32_u24 v{T+2}, {IS}, v{T+2}")
    A("s_lshl_b32 s39, s32, 8")
    A(f"v_lshrrev_b32 v{T+3}, 5, v{T}")
    A(f"v_lshlrev_b32 v{T+3}, 4, v{T+3}")
    A(f"v_add3_u32 v{T+2}, v{T+2}, v{T+3}, s39")
    for ci in range(2):
        for q4 in range(4):
            A(f"ds_write_b128 v{T+2}, {vr(G.acc(0, ci) + 4 * q4, 4)} offset:{ci * 128 + q4 * 32}")
    A(f"s_add_u32 s44, s6, {WS_P}")
    A("s_addc_u32 s45, s7, 0")
    A(f"s_mul_i32 s33, s58, {S * D * 4}")
    A("s_add_u32 s44, s44, s33")
    A("s_addc_u32 s45, s45, 0")
    A(f"s_mov_b32 s46, {S * D * 4}")
    A("s_mov_b32 s47, 0x00020000")
    A(f"v_lshrrev_b32 v{T+2}, 5, v{G.TID}")
    A(f"v_and_b32 v{T+3}, 31, v{G.TID}")
    A(f"v_lshlrev_b32 v{T+3}, 4, v{T+3}")
    A(f"v_mul_u32_u24 v{T+4}, {IS}, v{T+2}")
    A(f"v_add_u32 v{T+4}, v{T+4}, v{T+3}")
    A(f"v_add_u32 v{T+2}, s36, v{T+2}")
    A(f"v_mul_u32_u24 v{T+2}, 2560, v{T+2}")
    A("s_lshl_b32 s37, s37, 1")
    A(f"v_add3_u32 v{T+2}, v{T+2}, v{T+3}, s37")
    A("s_waitcnt lgkmcnt(0)")
    A("s_barrier")
    for i in range(8):
        A(f"ds_read_b128 {vr(4 * i, 4)}, v{T+4} offset:{i * 16 * IS}")
    for i in range(8):
        A(f"s_mov_b32 s39, {i * 16 * 2560}")
        A(f"s_waitcnt lgkmcnt({7 - i})")
        A(f"buffer_store_dwordx4 {vr(4 * i, 4)}, v{T+2}, s[44:47], s39 offen")
    A.label("AT_done")
    A("s_endpgm")
    return kernel_desc(name, max(104, G.NV))


def main():
    A = Asm()
    hdr = open("parallel_sum__mha_block__glu_gated_geglu__prompt.s.ref").read().split("; Override")[0]
    descs = [gen_ln(A)]
    d1, lds1, n1 = gen_gemm1(A)
    descs.append(d1)
    descs.append(gen_attn(A))
    d2, lds2, n2 = gen_gemm2(A, 1, 2)
    descs.append(d2)
    out = hdr
    out += "; @launch kernel=ln_kernel grid=(512,1,1) block=(256,1,1) lds=0\n"
    out += f"; @launch kernel=gemm1_kernel grid=({n1},1,1) block=(768,1,1) lds={lds1}\n"
    out += f"; @launch kernel=attn_kernel grid=({256 + NGW},1,1) block=(512,1,1) lds={LDS_ATT}\n"
    out += f"; @launch kernel=gemm2_kernel grid=({n2},1,1) block=(256,1,1) lds={lds2}\n"
    out += '.amdgcn_target "amdgcn-amd-amdhsa--gfx950"\n.text\n'
    out += "\n".join(A.lines) + "\n"
    out += "".join(descs)
    dst = sys.argv[1] if len(sys.argv) > 1 else "parallel_sum__mha_block__glu_gated_geglu__prompt.s"
    open(dst, "w").write(out)


if __name__ == "__main__":
    main()
```

```python
import os
import struct
import sys

FL = set(os.environ.get('FLAGS', '').split(','))

from gen import Asm, vr, sr, kernel_begin, kernel_desc, gen_ln

S = 2048
D = 640
H = 32
DH = 20
DF = 1728

WS_XN = 0
WS_Q = 4 << 20
WS_K = 8 << 20
WS_V = 12 << 20
WS_H = 16 << 20
WS_P = 32 << 20
WS_O = 24 << 20
HEADB = 2048 * 64

CSCALE = DH ** -0.5 * 1.4426950408889634


def fbits(x):
    return struct.unpack("<I", struct.pack("<f", x))[0]


NST = 4
NSTB = 5


STAMPN = [0]


def stamp(A):
    n = STAMPN[0]
    if n < 15:
        A(f"s_memtime s[{60 + 2 * n}:{61 + 2 * n}]")
    STAMPN[0] += 1


class Gemm:
    def __init__(self, TM, TN, WM=2, WN=2):
        self.TM, self.TN, self.WM, self.WN = TM, TN, WM, WN
        NW = WM * WN
        self.BM, self.BN = 32 * TM * WM, 32 * TN * WN
        self.RS = self.BN * 2
        self.XB = self.BM * 64
        self.WB = self.BN * 64
        self.STAGE = self.XB + self.WB
        self.LDS = NST * self.STAGE
        self.nx = self.BM // 16 // NW
        self.nwi = self.BN // 16
        self.nw = (self.nwi + NW - 1) // NW
        self.mode = {64: 'x1', 128: 'x2', 160: 'lin'}[self.BN]
        self.naw = 2 if self.mode == 'x2' else 1
        self.ACC = 0
        n = TM * TN * 16
        self.FX = n
        self.FW = self.FX + 8 * TM
        self.AX = self.FW + 8 * TN
        self.AW = self.AX + 2
        self.GX = self.AW + 2
        self.GW = self.GX + 2 * self.nx
        self.TID = self.GW + 2 * self.nw
        self.T = self.TID + 1
        if self.T & 1:
            self.T += 1
        self.NV = self.T + 24

    def acc(self, ti, ci):
        return self.ACC + (ti * self.TN + ci) * 16

    def setup(self, A):
        T = self.T
        A(f"v_mov_b32 v{self.TID}, v0")
        A(f"v_and_b32 v{T}, 63, v0")
        A(f"v_lshrrev_b32 v{T+1}, 6, v0")
        A("s_nop 0")
        A(f"v_readfirstlane_b32 s30, v{T+1}")
        A("s_nop 3")
        if self.WN == 2:
            A("s_lshr_b32 s31, s30, 1")
            A("s_and_b32 s32, s30, 1")
        else:
            A("s_mov_b32 s31, s30")
            A("s_mov_b32 s32, 0")
        A(f"v_and_b32 v{T+2}, 31, v{T}")
        A(f"s_mul_i32 s33, s31, {32 * self.TM}")
        A(f"v_add_u32 v{T+2}, s33, v{T+2}")
        A(f"v_lshrrev_b32 v{T+3}, 5, v{T}")
        A(f"v_bfe_u32 v{T+4}, v{T}, 2, 2")
        A(f"v_xor_b32 v{T+3}, v{T+3}, v{T+4}")
        A(f"v_lshlrev_b32 v{T+3}, 4, v{T+3}")
        A(f"v_lshl_add_u32 v{self.AX}, v{T+2}, 6, v{T+3}")
        A(f"v_xor_b32 v{self.AX+1}, 32, v{self.AX}")
        RS = self.RS
        A(f"v_lshrrev_b32 v{T+2}, 5, v{T}")
        A(f"v_lshlrev_b32 v{T+2}, 3, v{T+2}")
        A(f"v_bfe_u32 v{T+3}, v{T}, 2, 2")
        A(f"v_add_u32 v{T+2}, v{T+2}, v{T+3}")
        A(f"v_mul_u32_u24 v{T+2}, {RS}, v{T+2}")
        if self.mode == 'x2':
            A("s_lshl_b32 s33, s32, 1")
            A(f"v_xor_b32 v{T+3}, s33, v{T+3}")
            A(f"v_lshl_add_u32 v{T+2}, v{T+3}, 6, v{T+2}")
        elif self.mode == 'x1':
            A(f"v_lshrrev_b32 v{T+3}, 1, v{T+3}")
            A(f"v_xor_b32 v{T+3}, s32, v{T+3}")
            A(f"v_lshl_add_u32 v{T+2}, v{T+3}, 6, v{T+2}")
        A(f"v_bfe_u32 v{T+3}, v{T}, 4, 1")
        A(f"v_lshl_add_u32 v{T+2}, v{T+3}, 5, v{T+2}")
        A(f"v_and_b32 v{T+3}, 3, v{T}")
        A(f"v_lshl_add_u32 v{T+2}, v{T+3}, 3, v{T+2}")
        A(f"v_add_u32 v{self.AW}, {self.XB}, v{T+2}")
        if self.mode == 'x2':
            A(f"v_xor_b32 v{self.AW+1}, 64, v{self.AW}")
        A(f"s_mul_i32 s28, s30, {self.nx * 1024}")
        for j in range(self.nw):
            if self.mode == 'lin':
                A(f"s_add_u32 s{24+j}, s30, {4 * j}")
                A(f"s_min_u32 s{24+j}, s{24+j}, {self.nwi - 1}")
            else:
                A(f"s_mul_i32 s{24+j}, s30, {self.nw}")
                A(f"s_add_u32 s{24+j}, s{24+j}, {j}")

    def xaddr(self, A, base_s, xstride, tok0_s):
        T = self.T
        A(f"v_lshrrev_b32 v{T+2}, 2, v{T}")
        A(f"s_mul_i32 s33, s30, {16 * self.nx}")
        A(f"s_add_u32 s33, s33, s{tok0_s}")
        A(f"v_add_u32 v{T+2}, s33, v{T+2}")
        A(f"s_mov_b32 s33, {xstride}")
        A(f"v_mul_lo_u32 v{T+2}, v{T+2}, s33")
        A(f"v_and_b32 v{T+3}, 3, v{T}")
        A(f"v_bfe_u32 v{T+4}, v{T}, 4, 2")
        A(f"v_xor_b32 v{T+3}, v{T+3}, v{T+4}")
        A(f"v_lshl_add_u32 v{T+2}, v{T+3}, 4, v{T+2}")
        for j in range(self.nx):
            if j:
                A(f"v_add_u32 v{T+2}, {16 * xstride}, v{T+2}")
            A(f"v_mov_b32 v{self.GX+2*j+1}, s{base_s+1}")
            A(f"v_add_co_u32 v{self.GX+2*j}, vcc, s{base_s}, v{T+2}")
            A("s_nop 1")
            A(f"v_addc_co_u32 v{self.GX+2*j+1}, vcc, 0, v{self.GX+2*j+1}, vcc")

    def wlane(self, A, j):
        T = self.T
        if self.mode == 'x2':
            A(f"v_lshrrev_b32 v{T+2}, 4, v{T}")
            A(f"v_bfe_u32 v{T+3}, v{T}, 2, 2")
            A(f"v_xor_b32 v{T+3}, v{T+3}, v{T+2}")
            A(f"s_lshl_b32 s33, s{24+j}, 2")
            A(f"v_add_u32 v{T+2}, s33, v{T+2}")
            A(f"v_and_b32 v{T+4}, 3, v{T}")
        elif self.mode == 'x1':
            A(f"v_lshrrev_b32 v{T+2}, 3, v{T}")
            A(f"v_bfe_u32 v{T+3}, v{T}, 2, 1")
            A(f"v_bfe_u32 v{T+4}, v{T}, 4, 1")
            A(f"v_xor_b32 v{T+3}, v{T+3}, v{T+4}")
            A(f"s_lshl_b32 s33, s{24+j}, 3")
            A(f"v_add_u32 v{T+2}, s33, v{T+2}")
            A(f"v_and_b32 v{T+4}, 3, v{T}")
        else:
            A(f"s_lshl_b32 s33, s{24+j}, 6")
            A(f"v_add_u32 v{T+5}, s33, v{T}")
            A("s_movk_i32 s33, 3277")
            A(f"v_mul_lo_u32 v{T+2}, v{T+5}, s33")
            A(f"v_lshrrev_b32 v{T+2}, 16, v{T+2}")
            A(f"v_mul_u32_u24 v{T+3}, 20, v{T+2}")
            A(f"v_sub_u32 v{T+5}, v{T+5}, v{T+3}")
            A(f"v_lshrrev_b32 v{T+3}, 2, v{T+5}")
            A(f"v_and_b32 v{T+4}, 3, v{T+5}")

    def waddr_plain(self, A, base_s, wstride, col0b_s):
        T = self.T
        for j in range(self.nw):
            self.wlane(A, j)
            A(f"s_mov_b32 s33, {wstride}")
            A(f"v_mul_lo_u32 v{T+2}, v{T+2}, s33")
            A(f"v_lshl_add_u32 v{T+2}, v{T+3}, 6, v{T+2}")
            A(f"v_lshl_add_u32 v{T+2}, v{T+4}, 4, v{T+2}")
            A(f"v_add_u32 v{T+2}, s{col0b_s}, v{T+2}")
            A(f"v_mov_b32 v{self.GW+2*j+1}, s{base_s+1}")
            A(f"v_add_co_u32 v{self.GW+2*j}, vcc, s{base_s}, v{T+2}")
            A("s_nop 1")
            A(f"v_addc_co_u32 v{self.GW+2*j+1}, vcc, 0, v{self.GW+2*j+1}, vcc")

    def fin_setup(self, A):
        for j in range(self.nw):
            A(f"s_lshl_b32 s{24+j}, s{24+j}, 10")
            A(f"s_add_u32 s{24+j}, s{24+j}, {self.XB}")

    def issue(self, A, st):
        for j in range(self.nx):
            A(f"s_add_u32 m0, s28, {st * self.STAGE + j * 1024}")
            A("s_nop 0")
            A(f"global_load_lds_dwordx4 {vr(self.GX+2*j, 2)}, off")
            A(f"v_lshl_add_u64 {vr(self.GX+2*j, 2)}, {vr(self.GX+2*j, 2)}, 0, s[40:41]")
        for j in range(self.nw):
            A(f"s_add_u32 m0, s{24+j}, {st * self.STAGE}")
            A("s_nop 0")
            A(f"global_load_lds_dwordx4 {vr(self.GW+2*j, 2)}, off")
            A(f"v_lshl_add_u64 {vr(self.GW+2*j, 2)}, {vr(self.GW+2*j, 2)}, 0, s[42:43]")

    def read_frags(self, A, st, ks, fs):
        RS = self.RS
        for ti in range(self.TM):
            A(f"ds_read_b128 {vr(self.FX + fs * 4 * self.TM + ti * 4, 4)}, v{self.AX+ks} offset:{st * self.STAGE + ti * 2048}")
        for ci in range(self.TN):
            for t in range(2):
                if self.mode == 'x2':
                    A(f"ds_read_b64_tr_b16 {vr(self.FW + fs * 4 * self.TN + ci * 4 + 2 * t, 2)}, v{self.AW+ci} offset:{st * self.STAGE + (ks * 16 + 4 * t) * RS}")
                else:
                    A(f"ds_read_b64_tr_b16 {vr(self.FW + fs * 4 * self.TN + ci * 4 + 2 * t, 2)}, v{self.AW} offset:{st * self.STAGE + (ks * 16 + 4 * t) * RS + ci * 64}")

    def mfmas(self, A, fs, swapped):
        for ti in range(self.TM):
            for ci in range(self.TN):
                acc = vr(self.acc(ti, ci), 16)
                fx = vr(self.FX + fs * 4 * self.TM + ti * 4, 4)
                fw = vr(self.FW + fs * 4 * self.TN + ci * 4, 4)
                if swapped:
                    A(f"v_mfma_f32_32x32x16_bf16 {acc}, {fw}, {fx}, {acc}")
                else:
                    A(f"v_mfma_f32_32x32x16_bf16 {acc}, {fx}, {fw}, {acc}")

    def mainloop(self, A, nkt, swapped, hook=None):
        npw = self.nx + self.nw
        nrd = self.TM + 2 * self.TN
        for r in range(self.TM * self.TN * 16):
            A(f"v_mov_b32 v{self.ACC + r}, 0")
        for kt in range(min(3, nkt)):
            if hook:
                hook(A, kt)
            self.issue(A, kt % NST)
        for kt in range(nkt):
            st = kt % NST
            if 'STAMP' in FL and kt in (0, 1, 2, 3, 6, 10, 14, 19):
                stamp(A)
            inflight = min(nkt, kt + 3) - kt - 1
            A(f"s_waitcnt vmcnt({inflight * npw})")
            A("s_barrier")
            self.read_frags(A, st, 0, 0)
            self.read_frags(A, st, 1, 1)
            if kt + 3 < nkt:
                if hook:
                    hook(A, kt + 3)
                self.issue(A, (kt + 3) % NST)
            A(f"s_waitcnt lgkmcnt({min(nrd, 15)})")
            self.mfmas(A, 0, swapped)
            A("s_waitcnt lgkmcnt(0)")
            self.mfmas(A, 1, swapped)
        if 'STAMP' in FL:
            stamp(A)
        A("s_barrier")
        A("s_nop 15")


class GemmB:
    def __init__(self, kind):
        self.kind = kind
        if kind == 'qkv':
            self.TM, self.TN, self.BN = 1, 5, 160
        else:
            self.TM, self.TN, self.BN = 2, 2, 192
        self.RS = self.BN * 2
        self.XB = 256 * 64
        self.WB = self.BN * 64
        self.STAGE = self.XB + self.WB
        self.nwi = self.BN // 16
        self.cpr = self.RS // 16
        self.ACC = 0
        n = self.TM * self.TN * 16
        self.FX = n
        self.FW = self.FX + 8 * self.TM
        self.AX = self.FW + 8 * self.TN
        self.AW = self.AX + 2
        self.GA = self.AW + 2
        self.TID = self.GA + 6
        self.T = self.TID + 2
        self.NV = self.T + 22

    def acc(self, ti, ci):
        return self.ACC + (ti * self.TN + ci) * 16

    def xaddr_one(self, A, dst, idx_s):
        T = self.T
        A(f"s_lshl_b32 s33, s{idx_s}, 4")
        A("s_add_u32 s33, s33, s36")
        A(f"v_lshrrev_b32 v{T+2}, 2, v{T}")
        A(f"v_add_u32 v{T+2}, s33, v{T+2}")
        A(f"v_mul_u32_u24 v{T+2}, 1280, v{T+2}")
        A(f"v_and_b32 v{T+3}, 3, v{T}")
        A(f"v_bfe_u32 v{T+4}, v{T}, 4, 2")
        A(f"v_xor_b32 v{T+3}, v{T+3}, v{T+4}")
        A(f"v_lshl_add_u32 v{T+2}, v{T+3}, 4, v{T+2}")
        A(f"v_mov_b32 v{dst+1}, s7")
        A(f"v_add_co_u32 v{dst}, vcc, s6, v{T+2}")
        A("s_nop 1")
        A(f"v_addc_co_u32 v{dst+1}, vcc, 0, v{dst+1}, vcc")

    def waddr_one(self, A, dst, idx_s):
        T = self.T
        A(f"s_lshl_b32 s33, s{idx_s}, 6")
        A(f"v_add_u32 v{T+5}, s33, v{T}")
        if self.kind == 'qkv':
            A("s_movk_i32 s33, 3277")
            A(f"v_mul_lo_u32 v{T+2}, v{T+5}, s33")
            A(f"v_lshrrev_b32 v{T+2}, 16, v{T+2}")
            A(f"v_mul_u32_u24 v{T+3}, 20, v{T+2}")
            A(f"v_sub_u32 v{T+5}, v{T+5}, v{T+3}")
            A(f"v_mul_u32_u24 v{T+2}, 3840, v{T+2}")
            A(f"v_lshl_add_u32 v{T+2}, v{T+5}, 4, v{T+2}")
            A(f"v_add_u32 v{T+2}, s37, v{T+2}")
            A(f"v_mov_b32 v{dst+1}, s5")
            A(f"v_add_co_u32 v{dst}, vcc, s4, v{T+2}")
            A("s_nop 1")
            A(f"v_addc_co_u32 v{dst+1}, vcc, 0, v{dst+1}, vcc")
        else:
            A("s_movk_i32 s33, 2731")
            A(f"v_mul_lo_u32 v{T+2}, v{T+5}, s33")
            A(f"v_lshrrev_b32 v{T+2}, 16, v{T+2}")
            A(f"v_mul_u32_u24 v{T+3}, 24, v{T+2}")
            A(f"v_sub_u32 v{T+5}, v{T+5}, v{T+3}")
            A(f"v_lshrrev_b32 v{T+3}, 2, v{T+5}")
            A(f"v_bfe_u32 v{T+4}, v{T+2}, 1, 1")
            A(f"v_xor_b32 v{T+3}, v{T+3}, v{T+4}")
            A(f"v_and_b32 v{T+5}, 3, v{T+5}")
            A(f"v_mul_u32_u24 v{T+2}, {DF * 2}, v{T+2}")
            A(f"v_lshl_add_u32 v{T+2}, v{T+5}, 4, v{T+2}")
            A(f"v_lshrrev_b32 v{T+4}, 1, v{T+3}")
            A(f"v_lshl_add_u32 v{T+2}, v{T+4}, 6, v{T+2}")
            A(f"v_add_u32 v{T+2}, s37, v{T+2}")
            A(f"v_and_b32 v{T+3}, 1, v{T+3}")
            A(f"v_cmp_eq_u32 vcc, 1, v{T+3}")
            A(f"v_mov_b32 v{T+4}, s8")
            A(f"v_mov_b32 v{T+5}, s9")
            A(f"v_mov_b32 v{T+6}, s10")
            A(f"v_mov_b32 v{T+7}, s11")
            A(f"v_cndmask_b32 v{T+4}, v{T+4}, v{T+6}, vcc")
            A(f"v_cndmask_b32 v{T+5}, v{T+5}, v{T+7}, vcc")
            A(f"v_add_co_u32 v{dst}, vcc, v{T+4}, v{T+2}")
            A("s_nop 1")
            A(f"v_addc_co_u32 v{dst+1}, vcc, 0, v{T+5}, vcc")

    def setup(self, A, wadv):
        T = self.T
        lab = A.newlabel("G1_x1")
        lab2 = A.newlabel("G1_x2")
        A(f"v_mov_b32 v{self.TID}, v0")
        A(f"v_and_b32 v{T}, 63, v0")
        A(f"v_lshrrev_b32 v{T+1}, 6, v0")
        A("s_nop 0")
        A(f"v_readfirstlane_b32 s30, v{T+1}")
        A("s_waitcnt lgkmcnt(0)")
        self.xaddr_one(A, self.GA, 30)
        A("s_lshl_b32 s24, s30, 10")
        A("s_mov_b32 s40, 64")
        A("s_mov_b32 s41, 0")
        A(f"s_mov_b32 s44, {wadv}")
        A("s_mov_b32 s45, 0")
        A("s_cmp_lt_u32 s30, 4")
        A(f"s_cbranch_scc0 {lab}")
        A("s_add_u32 s25, s30, 12")
        self.xaddr_one(A, self.GA + 2, 25)
        A("s_lshl_b32 s25, s25, 10")
        A("s_mov_b32 s42, 64")
        A(f"s_branch {lab2}")
        A.label(lab)
        A("s_sub_u32 s25, s30, 4")
        self.waddr_one(A, self.GA + 2, 25)
        A("s_lshl_b32 s25, s25, 10")
        A(f"s_add_u32 s25, s25, {self.XB}")
        A(f"s_mov_b32 s42, {wadv}")
        A.label(lab2)
        A("s_mov_b32 s43, 0")
        A("s_add_u32 s26, s30, 8")
        A(f"s_min_u32 s26, s26, {self.nwi - 1}")
        self.waddr_one(A, self.GA + 4, 26)
        A("s_lshl_b32 s26, s26, 10")
        A(f"s_add_u32 s26, s26, {self.XB}")

    def issue(self, A, st):
        for j in range(3):
            A(f"s_add_u32 m0, s{24+j}, {st * self.STAGE}")
            A("s_nop 0")
            A(f"global_load_lds_dwordx4 {vr(self.GA+2*j, 2)}, off")
            A(f"v_lshl_add_u64 {vr(self.GA+2*j, 2)}, {vr(self.GA+2*j, 2)}, 0, s[{40+2*j}:{41+2*j}]")

    def frag_setup(self, A):
        T = self.T
        if self.kind == 'qkv':
            A("s_and_b32 s31, s30, 7")
            A("s_mov_b32 s32, 0")
        else:
            A("s_and_b32 s31, s30, 3")
            A("s_lshr_b32 s32, s30, 2")
        A(f"v_and_b32 v{T+2}, 31, v{T}")
        A(f"s_mul_i32 s33, s31, {32 * self.TM}")
        A(f"v_add_u32 v{T+2}, s33, v{T+2}")
        A(f"v_lshrrev_b32 v{T+3}, 5, v{T}")
        A(f"v_bfe_u32 v{T+4}, v{T}, 2, 2")
        A(f"v_xor_b32 v{T+3}, v{T+3}, v{T+4}")
        A(f"v_lshlrev_b32 v{T+3}, 4, v{T+3}")
        A(f"v_lshl_add_u32 v{self.AX}, v{T+2}, 6, v{T+3}")
        A(f"v_xor_b32 v{self.AX+1}, 32, v{self.AX}")
        A(f"v_lshrrev_b32 v{T+2}, 5, v{T}")
        A(f"v_lshlrev_b32 v{T+2}, 3, v{T+2}")
        A(f"v_bfe_u32 v{T+3}, v{T}, 2, 2")
        A(f"v_add_u32 v{T+2}, v{T+2}, v{T+3}")
        A(f"v_mul_u32_u24 v{T+2}, {self.RS}, v{T+2}")
        if self.kind == 'glu':
            A(f"v_lshrrev_b32 v{T+3}, 1, v{T+3}")
            A("s_lshl_b32 s33, s32, 1")
            A(f"v_xor_b32 v{T+3}, s33, v{T+3}")
            A(f"v_lshl_add_u32 v{T+2}, v{T+3}, 6, v{T+2}")
        A(f"v_bfe_u32 v{T+3}, v{T}, 4, 1")
        A(f"v_lshl_add_u32 v{T+2}, v{T+3}, 5, v{T+2}")
        A(f"v_and_b32 v{T+3}, 3, v{T}")
        A(f"v_lshl_add_u32 v{T+2}, v{T+3}, 3, v{T+2}")
        A(f"v_add_u32 v{self.AW}, {self.XB}, v{T+2}")
        if self.kind == 'glu':
            A(f"v_xor_b32 v{self.AW+1}, 64, v{self.AW}")

    def read_frags(self, A, st, ks, fs):
        RS = self.RS
        for ti in range(self.TM):
            A(f"ds_read_b128 {vr(self.FX + fs * 4 * self.TM + ti * 4, 4)}, v{self.AX+ks} offset:{st * self.STAGE + ti * 2048}")
        for ci in range(self.TN):
            for t in range(2):
                if self.kind == 'glu':
                    A(f"ds_read_b64_tr_b16 {vr(self.FW + fs * 4 * self.TN + ci * 4 + 2 * t, 2)}, v{self.AW+ci} offset:{st * self.STAGE + (ks * 16 + 4 * t) * RS}")
                else:
                    A(f"ds_read_b64_tr_b16 {vr(self.FW + fs * 4 * self.TN + ci * 4 + 2 * t, 2)}, v{self.AW} offset:{st * self.STAGE + (ks * 16 + 4 * t) * RS + ci * 64}")

    def mfmas(self, A, fs, swapped):
        for ti in range(self.TM):
            for ci in range(self.TN):
                acc = vr(self.acc(ti, ci), 16)
                fx = vr(self.FX + fs * 4 * self.TM + ti * 4, 4)
                fw = vr(self.FW + fs * 4 * self.TN + ci * 4, 4)
                if swapped:
                    A(f"v_mfma_f32_32x32x16_bf16 {acc}, {fw}, {fx}, {acc}")
                else:
                    A(f"v_mfma_f32_32x32x16_bf16 {acc}, {fx}, {fw}, {acc}")

    def mainloop(self, A, swapped, compute=True):
        nkt = 20
        nrd = self.TM + 2 * self.TN
        PF = NSTB - 1
        for kt in range(nkt):
            st = kt % NSTB
            if 'STAMP' in FL and kt in (0, 1, 2, 3, 6, 10, 14, 19):
                stamp(A)
            inflight = min(nkt, kt + PF) - kt - 1
            if compute and st >= 2:
                for i in range(2):
                    A(f"v_add_u32 v{self.T+16+i}, {(st & ~1) * self.STAGE}, v{self.AX+i}")
                    A(f"v_add_u32 v{self.T+18+i}, {(st & ~1) * self.STAGE}, v{self.AW+i}")
            A(f"s_waitcnt vmcnt({inflight * 3})")
            A("s_barrier")
            if compute:
                self.read_frags_big(A, st, 0, 0)
                self.read_frags_big(A, st, 1, 1)
            if kt + PF < nkt:
                self.issue(A, (kt + PF) % NSTB)
            if compute:
                A(f"s_waitcnt lgkmcnt({min(nrd, 15)})")
                self.mfmas(A, 0, swapped)
                A("s_waitcnt lgkmcnt(0)")
                self.mfmas(A, 1, swapped)
        A("s_barrier")
        A("s_nop 15")

    def read_frags_big(self, A, st, ks, fs):
        if st < 2:
            self.read_frags(A, st, ks, fs)
            return
        sv = (self.AX, self.AW)
        T = self.T
        self.AX, self.AW = T + 16, T + 18
        self.read_frags(A, st & 1, ks, fs)
        self.AX, self.AW = sv

    def big_setup(self, A):
        pass


def gen_gemm1(A):
    name = "gemm1_kernel"
    NWG = 240
    kernel_begin(A, name)
    A(f"s_cmp_ge_u32 s2, {NWG}")
    A("s_cbranch_scc1 G1_done")
    A("s_load_dwordx2 s[4:5], s[0:1], 8")
    A("s_load_dwordx4 s[8:11], s[0:1], 32")
    A("s_load_dwordx2 s[6:7], s[0:1], 72")
    A("s_and_b32 s34, s2, 7")
    A("s_mul_i32 s34, s34, 30")
    A("s_lshr_b32 s35, s2, 3")
    A("s_add_u32 s35, s35, s34")
    A("s_and_b32 s34, s35, 7")
    A("s_lshr_b32 s35, s35, 3")
    A("s_lshl_b32 s36, s34, 8")
    A("s_cmp_ge_u32 s35, 12")
    A("s_cbranch_scc1 G1_glu")
    G = GemmB('qkv')
    T = G.T
    A("s_mul_i32 s37, s35, 320")
    G.setup(A, 32 * 3840)
    for st in range(NSTB - 1):
        G.issue(A, st)
    G.frag_setup(A)
    G.big_setup(A)
    for r in range(80):
        A(f"v_mov_b32 v{r}, 0")
    A("s_cmp_ge_u32 s30, 8")
    A("s_cbranch_scc1 G1_helper")
    A("s_cmp_ge_u32 s35, 8")
    A("s_cbranch_scc1 G1_v")
    G.mainloop(A, True)
    A("s_cmp_ge_u32 s35, 4")
    A(f"s_mov_b32 s38, {WS_Q}")
    A(f"s_cselect_b32 s38, {WS_K}, s38")
    A(f"s_mov_b32 s39, 0x{fbits(CSCALE):08x}")
    A(f"s_cselect_b32 s39, 1.0, s39")
    A("s_cselect_b32 s48, 3, 0")
    A("s_cselect_b32 s49, 0x3f803f80, 0")
    A("s_cselect_b32 s50, 0x3f80, 0")
    A(f"v_and_b32 v{T+2}, 31, v{T}")
    A("s_lshl_b32 s37, s30, 5")
    A(f"v_add_u32 v{T+2}, s37, v{T+2}")
    A(f"v_bfe_u32 v{T+3}, v{T+2}, 2, 2")
    A(f"v_and_b32 v{T+3}, s48, v{T+3}")
    A(f"v_lshlrev_b32 v{T+2}, 6, v{T+2}")
    for c in range(4):
        A(f"v_xor_b32 v{T+4}, {c}, v{T+3}")
        A(f"v_lshl_add_u32 v{G.FX+c}, v{T+4}, 4, v{T+2}")
        A(f"v_add_u32 v{G.FX+4+c}, 0x10000, v{G.FX+c}")
    A(f"v_mov_b32 v{T+8}, s49")
    A(f"v_mov_b32 v{T+9}, s50")
    for r in range(4):
        A(f"v_mov_b32 v{T+12+r}, 0")
    A("s_mov_b64 s[52:53], exec")
    A("s_mov_b32 s54, -1")
    A("s_mov_b32 s55, 0")
    A("s_mov_b32 s56, 0")
    A("s_mov_b32 s57, -1")
    for ci in range(5):
        for q4 in range(4):
            a = G.acc(0, ci) + 4 * q4
            for j in range(4):
                A(f"v_mul_f32 v{a+j}, s39, v{a+j}")
            A(f"v_cvt_pk_bf16_f32 v{T+6}, v{a}, v{a+1}")
            A(f"v_cvt_pk_bf16_f32 v{T+7}, v{a+2}, v{a+3}")
            for hh in range(2):
                col = ci * 32 + 8 * q4 + 4 * hh
                head, d = col // 20, col % 20
                hb = G.FX + (4 if head >= 4 else 0)
                ho = (head & 3) * 16384
                A(f"s_mov_b64 exec, s[{54 + 2 * hh}:{55 + 2 * hh}]")
                if d == 16:
                    A(f"ds_write_b128 v{hb+2}, {vr(T+6, 4)} offset:{ho}")
                    A(f"ds_write_b128 v{hb+3}, {vr(T+12, 4)} offset:{ho}")
                else:
                    A(f"ds_write_b64 v{hb+(d >> 3)}, {vr(T+6, 2)} offset:{ho + ((d >> 2) & 1) * 8}")
            A("s_mov_b64 exec, s[52:53]")
    A("s_branch G1_copyout")
    A.label("G1_helper")
    G.mainloop(A, True, compute=False)
    A("s_barrier")
    A("s_branch G1_done")
    A.label("G1_v")
    G.mainloop(A, False)
    A(f"s_mov_b32 s38, {WS_V}")
    A(f"v_and_b32 v{T+3}, 31, v{T}")
    A(f"v_lshrrev_b32 v{T+2}, 5, v{T}")
    A("s_lshl_b32 s37, s30, 11")
    A("s_movk_i32 s39, 3277")
    for ci in range(5):
        A(f"v_add_u32 v{T+4}, {ci * 32}, v{T+3}")
        A(f"v_mul_lo_u32 v{T+5}, v{T+4}, s39")
        A(f"v_lshrrev_b32 v{T+5}, 16, v{T+5}")
        A(f"v_mul_u32_u24 v{T+6}, 20, v{T+5}")
        A(f"v_sub_u32 v{T+6}, v{T+4}, v{T+6}")
        A(f"v_lshlrev_b32 v{T+5}, 14, v{T+5}")
        A(f"v_add_u32 v{T+5}, s37, v{T+5}")
        A(f"v_bfe_u32 v{T+7}, v{T+6}, 2, 2")
        A(f"v_xor_b32 v{T+7}, v{T+7}, v{T+2}")
        A(f"v_lshlrev_b32 v{T+7}, 4, v{T+7}")
        A(f"v_lshl_add_u32 v{T+7}, v{T+6}, 6, v{T+7}")
        A(f"v_add_u32 v{T+7}, v{T+7}, v{T+5}")
        A(f"v_xor_b32 v{T+8}, 32, v{T+7}")
        A(f"v_add_u32 v{T+9}, 12, v{T+6}")
        A(f"v_bfe_u32 v{T+10}, v{T+9}, 2, 2")
        A(f"v_xor_b32 v{T+10}, v{T+10}, v{T+2}")
        A(f"v_lshlrev_b32 v{T+10}, 4, v{T+10}")
        A(f"v_lshl_add_u32 v{T+10}, v{T+9}, 6, v{T+10}")
        A(f"v_add_u32 v{T+10}, v{T+10}, v{T+5}")
        A(f"v_xor_b32 v{T+11}, 32, v{T+10}")
        A(f"v_cmp_eq_u32 vcc, 8, v{T+6}")
        A(f"v_mov_b32 v{T+12}, 0x3f803f80")
        A("s_nop 0")
        A(f"v_cndmask_b32 v{T+16}, 0, v{T+12}, vcc")
        A(f"v_mov_b32 v{T+17}, v{T+16}")
        A(f"v_mov_b32 v{T+18}, v{T+16}")
        A(f"v_mov_b32 v{T+19}, v{T+16}")
        A(f"v_cmp_le_u32 s[52:53], 8, v{T+6}")
        a = G.acc(0, ci)
        for s_ in range(2):
            for j in range(4):
                A(f"v_cvt_pk_bf16_f32 v{T+12+j}, v{a + 8 * s_ + 2 * j}, v{a + 8 * s_ + 2 * j + 1}")
            A(f"ds_write_b128 v{T+7+s_}, {vr(T+12, 4)}")
            A("s_nop 1")
        A("s_mov_b64 s[54:55], exec")
        A("s_and_b64 exec, exec, s[52:53]")
        A(f"ds_write_b128 v{T+10}, {vr(T+16, 4)}")
        A(f"ds_write_b128 v{T+11}, {vr(T+16, 4)}")
        A("s_mov_b64 exec, s[54:55]")
        A("s_nop 1")
    A.label("G1_copyout")
    A("s_add_u32 s44, s6, s38")
    A("s_addc_u32 s45, s7, 0")
    A(f"s_mov_b32 s46, {4 << 20}")
    A("s_mov_b32 s47, 0x00020000")
    A(f"v_lshlrev_b32 v{T+2}, 4, v{G.TID}")
    A(f"v_add_u32 v{T+4}, 0x10000, v{T+2}")
    A("s_and_b32 s37, s35, 3")
    A("s_lshl_b32 s37, s37, 20")
    A("s_lshl_b32 s39, s36, 6")
    A("s_add_u32 s37, s37, s39")
    A(f"v_add_u32 v{T+3}, s37, v{T+2}")
    A("s_waitcnt lgkmcnt(0)")
    A("s_barrier")
    for i in range(16):
        A(f"ds_read_b128 {vr(4 * i, 4)}, v{T+2 if i < 8 else T+4} offset:{(i & 7) * 8192}")
    for i in range(16):
        A(f"s_mov_b32 s39, {(i >> 1) * 131072 + (i & 1) * 8192}")
        A(f"s_waitcnt lgkmcnt({15 - i})")
        A(f"buffer_store_dwordx4 {vr(4 * i, 4)}, v{T+3}, s[44:47], s39 offen")
    A("s_branch G1_done")
    A.label("G1_glu")
    STAMPN[0] = 0
    if 'STAMP' in FL:
        stamp(A)
    G = GemmB('glu')
    T = G.T
    A("s_sub_u32 s35, s35, 12")
    A("s_mul_i32 s37, s35, 192")
    G.setup(A, 32 * DF * 2)
    for st in range(NSTB - 1):
        G.issue(A, st)
    G.frag_setup(A)
    G.big_setup(A)
    for r in range(64):
        A(f"v_mov_b32 v{r}, 0")
    G.mainloop(A, True)
    if 'STAMP' in FL:
        stamp(A)
    IS = 208
    A(f"v_and_b32 v{T+2}, 31, v{T}")
    A("s_lshl_b32 s39, s31, 6")
    A(f"v_add_u32 v{T+2}, s39, v{T+2}")
    A(f"v_mul_u32_u24 v{T+2}, {IS}, v{T+2}")
    A("s_lshl_b32 s39, s32, 6")
    A(f"v_lshrrev_b32 v{T+3}, 5, v{T}")
    A(f"v_lshlrev_b32 v{T+3}, 3, v{T+3}")
    A(f"v_add3_u32 v{T+2}, v{T+2}, v{T+3}, s39")
    A("s_mov_b32 s38, 0x3d372713")
    A("s_mov_b32 s39, 0xc0135761")
    for ti in range(2):
        g = G.acc(ti, 0)
        u = G.acc(ti, 1)
        for q4 in range(4):
            for j in range(4):
                r = 4 * q4 + j
                t0 = T + 8 + j
                A(f"v_mul_f32 v{t0}, v{g + r}, v{g + r}")
                A(f"v_fma_f32 v{t0}, v{t0}, s38, 1.0")
                A(f"v_mul_f32 v{t0}, v{t0}, v{g + r}")
                A(f"v_mul_f32 v{t0}, s39, v{t0}")
                A(f"v_exp_f32 v{t0}, v{t0}")
                A(f"v_mul_f32 v{g + r}, v{g + r}, v{u + r}")
            for j in range(4):
                t0 = T + 8 + j
                A(f"v_add_f32 v{t0}, 1.0, v{t0}")
                A(f"v_rcp_f32 v{t0}, v{t0}")
            A("s_nop 0")
            for j in range(4):
                r = 4 * q4 + j
                t0 = T + 8 + j
                A(f"v_mul_f32 v{t0}, v{g + r}, v{t0}")
            A(f"v_cvt_pk_bf16_f32 v{T+12}, v{T+8}, v{T+9}")
            A(f"v_cvt_pk_bf16_f32 v{T+13}, v{T+10}, v{T+11}")
            A(f"ds_write_b64 v{T+2}, {vr(T+12, 2)} offset:{ti * 32 * IS + q4 * 16}")
    A(f"s_add_u32 s44, s6, {WS_H}")
    A("s_addc_u32 s45, s7, 0")
    A(f"s_mov_b32 s46, {S * DF * 2}")
    A("s_mov_b32 s47, 0x00020000")
    A("s_movk_i32 s33, 5462")
    A(f"v_mul_lo_u32 v{T+2}, v{G.TID}, s33")
    A(f"v_lshrrev_b32 v{T+2}, 16, v{T+2}")
    A(f"v_mul_u32_u24 v{T+3}, 12, v{T+2}")
    A(f"v_sub_u32 v{T+3}, v{G.TID}, v{T+3}")
    A(f"v_lshlrev_b32 v{T+3}, 4, v{T+3}")
    A(f"v_mul_u32_u24 v{T+4}, {IS}, v{T+2}")
    A(f"v_add_u32 v{T+4}, v{T+4}, v{T+3}")
    A(f"v_add_u32 v{T+2}, s36, v{T+2}")
    A(f"v_mul_u32_u24 v{T+2}, {DF * 2}, v{T+2}")
    A(f"v_add3_u32 v{T+2}, v{T+2}, v{T+3}, s37")
    A("s_waitcnt lgkmcnt(0)")
    A("s_barrier")
    for i in range(4):
        A(f"ds_read_b128 {vr(4 * i, 4)}, v{T+4} offset:{i * 64 * IS}")
    for i in range(4):
        A(f"s_mov_b32 s39, {i * 64 * DF * 2}")
        A(f"s_waitcnt lgkmcnt({3 - i})")
        A(f"buffer_store_dwordx4 {vr(4 * i, 4)}, v{T+2}, s[44:47], s39 offen")
    if 'STAMP' in FL:
        stamp(A)
        A("s_waitcnt vmcnt(0)")
        stamp(A)
        A("s_load_dwordx2 s[20:21], s[0:1], 64")
        A("s_waitcnt lgkmcnt(0)")
        A("s_mov_b32 s22, 256")
        A("s_mov_b32 s23, 0x00020000")
        A("s_lshr_b32 s39, s2, 3")
        A("s_sub_u32 s39, s39, 14")
        A("s_and_b32 s38, s2, 7")
        A("s_cmp_eq_u32 s38, 3")
        A("s_cselect_b32 s39, s39, 99")
        A("s_cmp_eq_u32 s30, 0")
        A("s_cselect_b32 s39, s39, 99")
        A("s_lshl_b32 s39, s39, 6")
        for n in range(STAMPN[0]):
            A(f"v_mov_b32 v{T+6}, s{60 + 2 * n}")
            A(f"v_mov_b32 v{T+7}, s39")
            A(f"buffer_store_dword v{T+6}, v{T+7}, s[20:23], 0 offen offset:{4 * n}")
    A.label("G1_done")
    A("s_endpgm")
    for q in range(768):
        assert (q * 2731) >> 16 == q // 24 and (q * 5462) >> 16 == q // 12
    return kernel_desc(name, max(GemmB('qkv').NV, G.NV)), max(131072, NSTB * 28672), NWG


def gen_gemm2(A, TM, TN):
    name = "gemm2_kernel"
    G = Gemm(TM, TN)
    T = G.T
    ntt = S // G.BM
    nct = D // G.BN
    kernel_begin(A, name)
    A(f"s_cmp_ge_u32 s2, {ntt * nct}")
    A("s_cbranch_scc1 G2_done")
    A("s_load_dwordx2 s[4:5], s[0:1], 16")
    A("s_load_dwordx2 s[8:9], s[0:1], 48")
    A("s_load_dwordx2 s[10:11], s[0:1], 0")
    A("s_load_dwordx2 s[12:13], s[0:1], 56")
    A("s_load_dwordx2 s[6:7], s[0:1], 72")
    A("s_and_b32 s34, s2, 7")
    A("s_lshr_b32 s35, s2, 3")
    A(f"s_mul_i32 s33, s34, {ntt // 8}")
    A(f"s_and_b32 s34, s35, {ntt // 8 - 1}")
    A("s_add_u32 s34, s34, s33")
    A(f"s_lshr_b32 s35, s35, {(ntt // 8).bit_length() - 1}")
    G.setup(A)
    A(f"s_mul_i32 s36, s34, {G.BM}")
    A(f"s_mul_i32 s37, s35, {G.BN * 2}")
    A("s_waitcnt lgkmcnt(0)")
    A(f"s_add_u32 s14, s6, {WS_O}")
    A("s_addc_u32 s15, s7, 0")
    A(f"s_add_u32 s16, s6, {WS_H}")
    A("s_addc_u32 s17, s7, 0")
    A("s_mov_b32 s40, 64")
    A("s_mov_b32 s41, 0")
    A(f"s_mov_b32 s42, {32 * 1280}")
    A("s_mov_b32 s43, 0")
    G.xaddr(A, 14, 1280, 36)
    G.waddr_plain(A, 4, 1280, 37)
    G.fin_setup(A)
    G.mainloop(A, 20, True)
    IS = G.BN * 4 + 16
    A(f"v_and_b32 v{T+2}, 31, v{T}")
    A(f"s_mul_i32 s39, s31, {32 * TM}")
    A(f"v_add_u32 v{T+2}, s39, v{T+2}")
    A(f"v_mul_u32_u24 v{T+2}, {IS}, v{T+2}")
    A(f"s_mul_i32 s39, s32, {128 * TN}")
    A(f"v_lshrrev_b32 v{T+3}, 5, v{T}")
    A(f"v_lshlrev_b32 v{T+3}, 4, v{T+3}")
    A(f"v_add3_u32 v{T+2}, v{T+2}, v{T+3}, s39")
    for ti in range(TM):
        for ci in range(TN):
            for q4 in range(4):
                A(f"ds_write_b128 v{T+2}, {vr(G.acc(ti, ci) + 4 * q4, 4)} offset:{ti * 32 * IS + ci * 128 + q4 * 32}")
    A("s_mov_b32 s44, s10")
    A("s_mov_b32 s45, s11")
    A(f"s_mov_b32 s46, {S * D * 2}")
    A("s_mov_b32 s47, 0x00020000")
    A("s_mov_b32 s48, s12")
    A("s_mov_b32 s49, s13")
    A(f"s_mov_b32 s50, {S * D * 2}")
    A("s_mov_b32 s51, 0x00020000")
    cpr = G.BN // 8
    rpi = 256 // cpr
    nit = G.BM // rpi
    A(f"v_lshrrev_b32 v{T+2}, {cpr.bit_length() - 1}, v{G.TID}")
    A(f"v_and_b32 v{T+3}, {cpr - 1}, v{G.TID}")
    A(f"v_lshlrev_b32 v{T+5}, 5, v{T+3}")
    A(f"v_mul_u32_u24 v{T+4}, {IS}, v{T+2}")
    A(f"v_add_u32 v{T+4}, v{T+4}, v{T+5}")
    A(f"v_add_u32 v{T+2}, s36, v{T+2}")
    A(f"v_mul_u32_u24 v{T+2}, 1280, v{T+2}")
    A(f"v_lshlrev_b32 v{T+3}, 4, v{T+3}")
    A(f"v_add3_u32 v{T+2}, v{T+2}, v{T+3}, s37")
    A(f"s_add_u32 s52, s6, {WS_P}")
    A("s_addc_u32 s53, s7, 0")
    A(f"s_mov_b32 s54, {3 * S * D * 4}")
    A("s_mov_b32 s55, 0x00020000")
    A(f"v_lshlrev_b32 v{T+8}, 1, v{T+2}")
    for i in range(nit):
        A(f"s_mov_b32 s39, {i * rpi * 1280}")
        A(f"s_mov_b32 s38, {i * rpi * 2560}")
        A(f"buffer_load_dwordx4 {vr(48 + 4 * i, 4)}, v{T+2}, s[44:47], s39 offen")
        for p in range(3):
            A(f"s_mov_b32 s38, {i * rpi * 2560 + p * S * D * 4}")
            A(f"buffer_load_dwordx4 {vr(96 + 24 * i + 8 * p, 4)}, v{T+8}, s[52:55], s38 offen")
            A(f"buffer_load_dwordx4 {vr(100 + 24 * i + 8 * p, 4)}, v{T+8}, s[52:55], s38 offen offset:16")
    A("s_waitcnt lgkmcnt(0)")
    A("s_barrier")
    for i in range(nit):
        A(f"ds_read_b128 {vr(8 * i, 4)}, v{T+4} offset:{i * rpi * IS}")
        A(f"ds_read_b128 {vr(8 * i + 4, 4)}, v{T+4} offset:{i * rpi * IS + 16}")
    for i in range(nit):
        A(f"s_waitcnt vmcnt({7 * (nit - 1 - i) + i}) lgkmcnt({2 * (nit - 1 - i)})")
        for j in range(4):
            xr = 48 + 4 * i + j
            A(f"v_lshlrev_b32 v{T+6}, 16, v{xr}")
            A(f"v_and_b32 v{T+7}, 0xffff0000, v{xr}")
            for p in range(3):
                A(f"v_add_f32 v{8 * i + 2 * j}, v{8 * i + 2 * j}, v{96 + 24 * i + 8 * p + 2 * j}")
                A(f"v_add_f32 v{8 * i + 2 * j + 1}, v{8 * i + 2 * j + 1}, v{96 + 24 * i + 8 * p + 2 * j + 1}")
            A(f"v_add_f32 v{T+6}, v{T+6}, v{8 * i + 2 * j}")
            A(f"v_add_f32 v{T+7}, v{T+7}, v{8 * i + 2 * j + 1}")
            A(f"v_cvt_pk_bf16_f32 v{xr}, v{T+6}, v{T+7}")
        A(f"s_mov_b32 s39, {i * rpi * 1280}")
        A(f"buffer_store_dwordx4 {vr(48 + 4 * i, 4)}, v{T+2}, s[48:51], s39 offen")
    A.label("G2_done")
    A("s_endpgm")
    return kernel_desc(name, max(G.NV, 96 + 24 * nit)), G.LDS, ntt * nct


ACH = 128
ABUF = 16384
LDS_ATT = 73728
NGW = 240


def gen_attn(A):
    name = "attn_kernel"
    kernel_begin(A, name)
    A0 = A

    class F:
        inloop = False

        def __call__(self, s):
            if self.inloop:
                if 'AT_NOMFMA' in FL and s.startswith('v_mfma'):
                    return
                if 'AT_NODS' in FL and s.startswith('ds_read'):
                    return
                if 'AT_NOMAX' in FL and (s.startswith('v_max3') or s.startswith('v_permlane') or s.startswith('s_nop 1')):
                    return
                if 'AT_NOSYNC' in FL and (s.startswith('s_barrier') or s.startswith('buffer_load') or s.startswith('s_waitcnt vmcnt')):
                    return
                if 'AT_NOCVT' in FL and s.startswith('v_cvt_pk'):
                    return
            A0(s)

        def label(self, l):
            A0.label(l)
            if l == 'AT_loop':
                self.inloop = True

        def newlabel(self, p):
            return A0.newlabel(p)

        def raw(self, s):
            A0.raw(s)
    A = F()
    O = 0
    SS = (16, 32)
    QF = 48
    KF = 56
    VF = 64
    PF = 72
    AC0, AC1, AN0, AN1 = 80, 81, 82, 83
    M = 84
    FLOOR = 85
    GO = 86
    LN_ = 87
    B0, B1 = 88, 89
    THR = 90
    T = 92
    A(f"s_cmp_ge_u32 s2, {256 + NGW}")
    A("s_cbranch_scc1 AT_done")
    A("s_cmp_ge_u32 s2, 256")
    A("s_cbranch_scc1 AT_gemm")
    A("s_load_dwordx2 s[6:7], s[0:1], 72")
    A("s_and_b32 s34, s2, 31")
    A("s_lshr_b32 s35, s2, 5")
    A(f"v_and_b32 v{LN_}, 63, v0")
    A(f"v_lshrrev_b32 v{T+1}, 6, v0")
    A("s_nop 0")
    A(f"v_readfirstlane_b32 s30, v{T+1}")
    A("s_waitcnt lgkmcnt(0)")
    A("s_lshl_b32 s36, s34, 17")
    for (sd, off) in ((8, WS_Q), (12, WS_K), (16, WS_V)):
        A(f"s_add_u32 s{sd}, s6, {off}")
        A(f"s_addc_u32 s{sd+1}, s7, 0")
        A(f"s_add_u32 s{sd}, s{sd}, s36")
        A(f"s_addc_u32 s{sd+1}, s{sd+1}, 0")
        A(f"s_mov_b32 s{sd+2}, {HEADB}")
        A(f"s_mov_b32 s{sd+3}, 0x00020000")
    A(f"s_add_u32 s20, s6, {WS_O}")
    A("s_addc_u32 s21, s7, 0")
    A(f"s_mov_b32 s22, {S * D * 2}")
    A("s_mov_b32 s23, 0x00020000")
    A("s_lshl_b32 s31, s30, 10")
    A(f"v_lshlrev_b32 v{GO}, 4, v{LN_}")
    A(f"v_add_u32 v{GO}, s31, v{GO}")

    def dma(buf_s, chunk_s):
        A(f"s_add_u32 m0, s{buf_s}, s31")
        A("s_nop 0")
        A(f"buffer_load_dwordx4 v{GO}, s[12:15], s{chunk_s} offen lds")
        A(f"s_add_u32 m0, m0, 8192")
        A("s_nop 0")
        A(f"buffer_load_dwordx4 v{GO}, s[16:19], s{chunk_s} offen lds")

    A(f"v_and_b32 v{T+2}, 31, v{LN_}")
    A(f"v_lshrrev_b32 v{T+3}, 5, v{LN_}")
    A("s_lshl_b32 s36, s35, 8")
    A("s_lshl_b32 s37, s30, 5")
    A("s_add_u32 s36, s36, s37")
    A(f"v_add_u32 v{T+4}, s36, v{T+2}")
    A(f"v_lshlrev_b32 v{T+4}, 6, v{T+4}")
    A(f"v_lshl_add_u32 v{T+4}, v{T+3}, 4, v{T+4}")
    A(f"buffer_load_dwordx4 {vr(QF, 4)}, v{T+4}, s[8:11], 0 offen")
    A(f"buffer_load_dwordx4 {vr(QF+4, 4)}, v{T+4}, s[8:11], 0 offen offset:32")
    A("s_mov_b32 s44, 0")
    A(f"s_mov_b32 s45, {ABUF}")
    A(f"s_mov_b32 s46, {2 * ABUF}")
    A("s_mov_b32 s47, 0")
    dma(44, 47)
    A("s_movk_i32 s47, 8192")
    dma(45, 47)
    A("s_movk_i32 s47, 16384")
    A(f"v_bfe_u32 v{T+4}, v{LN_}, 2, 2")
    A(f"v_xor_b32 v{T+5}, v{T+3}, v{T+4}")
    A(f"v_lshlrev_b32 v{T+5}, 4, v{T+5}")
    A(f"v_lshl_add_u32 v{B0}, v{T+2}, 6, v{T+5}")
    A(f"v_xor_b32 v{B1}, 32, v{B0}")
    for r in range(16):
        A(f"v_mov_b32 v{O+r}, 0")
    A(f"v_mov_b32 v{M}, 0")
    A(f"v_mov_b32 v{FLOOR}, 0xff7fffff")
    A(f"v_mov_b32 v{THR}, 0xff7fffff")
    A(f"v_cmp_gt_u32 s[48:49], 32, v{LN_}")
    A("s_mov_b32 s40, 0")
    A("s_waitcnt vmcnt(2)")
    A("s_barrier")
    A(f"v_mov_b32 v{AC0}, v{B0}")
    A(f"v_mov_b32 v{AC1}, v{B1}")
    A(f"v_add_u32 v{AN0}, s45, v{B0}")
    A(f"v_add_u32 v{AN1}, s45, v{B1}")
    A(f"ds_read_b128 {vr(KF, 4)}, v{AC0}")
    A(f"ds_read_b128 {vr(KF+4, 4)}, v{AC1}")
    for j in range(8):
        A(f"v_mov_b32 v{PF+j}, 0")
        A(f"v_mov_b32 v{VF+j}, 0")
    A("s_waitcnt lgkmcnt(0)")
    A(f"v_mfma_f32_32x32x16_bf16 {vr(SS[0], 16)}, {vr(KF, 4)}, {vr(QF, 4)}, 0")
    A(f"v_mfma_f32_32x32x16_bf16 {vr(SS[0], 16)}, {vr(KF+4, 4)}, {vr(QF+4, 4)}, {vr(SS[0], 16)}")
    A(f"ds_read_b128 {vr(KF, 4)}, v{AC0} offset:2048")
    A(f"ds_read_b128 {vr(KF+4, 4)}, v{AC1} offset:2048")
    A("s_nop 15")
    A.label("AT_loop")
    for tl in range(4):
        SC, SN = SS[tl & 1], SS[(tl & 1) ^ 1]
        lab = A.newlabel("AT_nors")
        if tl == 1:
            A("s_waitcnt vmcnt(0)")
            A("s_barrier")
            A("s_cmp_lt_u32 s40, 14")
            lab2 = A.newlabel("AT_nodma")
            A(f"s_cbranch_scc0 {lab2}")
            dma(46, 47)
            A("s_add_u32 s47, s47, 8192")
            A.label(lab2)
        A("s_waitcnt lgkmcnt(2)")
        A(f"v_mfma_f32_32x32x16_bf16 {vr(O, 16)}, {vr(VF, 4)}, {vr(PF, 4)}, {vr(O, 16)}")
        A(f"v_max3_f32 v{T+2}, v{SC}, v{SC+1}, v{SC+2}")
        A(f"v_max3_f32 v{T+3}, v{SC+3}, v{SC+4}, v{SC+5}")
        A(f"v_max3_f32 v{T+2}, v{T+2}, v{SC+6}, v{SC+7}")
        A(f"v_max3_f32 v{T+3}, v{T+3}, v{SC+8}, v{SC+9}")
        A(f"v_max3_f32 v{T+2}, v{T+2}, v{SC+10}, v{SC+11}")
        A(f"v_max3_f32 v{T+3}, v{T+3}, v{SC+12}, v{SC+13}")
        A(f"v_mfma_f32_32x32x16_bf16 {vr(O, 16)}, {vr(VF+4, 4)}, {vr(PF+4, 4)}, {vr(O, 16)}")
        A(f"v_max3_f32 v{T+2}, v{T+2}, v{SC+14}, v{SC+15}")
        A(f"v_max_f32 v{T+2}, v{T+2}, v{T+3}")
        A(f"v_cmp_gt_f32 vcc, v{T+2}, v{THR}")
        A(f"s_cbranch_vccz {lab}")
        A(f"v_mov_b32 v{T+3}, v{T+2}")
        A("s_nop 1")
        A(f"v_permlane32_swap_b32 v{T+2}, v{T+3}")
        A("s_nop 1")
        A(f"v_max_f32 v{T+2}, v{T+2}, v{T+3}")
        A(f"v_max_f32 v{T+2}, v{T+2}, v{FLOOR}")
        A(f"v_mov_b32 v{FLOOR}, 0")
        A(f"v_mov_b32 v{THR}, 0x41000000")
        A(f"v_add_f32 v{M}, v{M}, v{T+2}")
        A(f"v_min_f32 v{T+3}, 0, v{T+2}")
        A(f"v_sub_f32 v{T+3}, v{T+3}, v{T+2}")
        A(f"v_exp_f32 v{T+3}, v{T+3}")
        for r in range(16):
            A(f"v_sub_f32 v{SC+r}, v{SC+r}, v{T+2}")
        A(f"v_sub_f32 v{T+4}, 0, v{M}")
        A(f"v_cvt_pk_bf16_f32 v{T+5}, v{T+4}, v{T+4}")
        A(f"v_and_b32 v{T+5}, 0xffff0000, v{T+5}")
        A(f"v_sub_f32 v{T+4}, v{T+4}, v{T+5}")
        A(f"v_cvt_pk_bf16_f32 v{T+6}, v{T+4}, v{T+4}")
        A(f"v_and_b32 v{T+6}, 0xffff0000, v{T+6}")
        A(f"v_sub_f32 v{T+4}, v{T+4}, v{T+6}")
        A(f"v_cvt_pk_bf16_f32 v{T+4}, v{T+4}, v{T+4}")
        A(f"v_and_b32 v{T+4}, 0xffff, v{T+4}")
        A(f"v_lshrrev_b32 v{T+5}, 16, v{T+5}")
        A(f"v_or_b32 v{T+5}, v{T+5}, v{T+6}")
        A(f"v_cndmask_b32 v{QF+6}, 0, v{T+5}, s[48:49]")
        A(f"v_cndmask_b32 v{QF+7}, 0, v{T+4}, s[48:49]")
        A("s_nop 15")
        for r in range(12):
            A(f"v_mul_f32 v{O+r}, v{O+r}, v{T+3}")
        A.label(lab)
        A(f"ds_read_b128 {vr(VF, 4)}, v{AC0} offset:{8192 + tl * 2048}")
        A(f"ds_read_b128 {vr(VF+4, 4)}, v{AC1} offset:{8192 + tl * 2048}")
        A("s_waitcnt lgkmcnt(2)")
        A(f"v_mfma_f32_32x32x16_bf16 {vr(SN, 16)}, {vr(KF, 4)}, {vr(QF, 4)}, 0")
        for r in range(0, 6):
            if 'NOEXP' not in FL:
                A(f"v_exp_f32 v{SC+r}, v{SC+r}")
        A(f"v_mfma_f32_32x32x16_bf16 {vr(SN, 16)}, {vr(KF+4, 4)}, {vr(QF+4, 4)}, {vr(SN, 16)}")
        for r in range(6, 12):
            if 'NOEXP' not in FL:
                A(f"v_exp_f32 v{SC+r}, v{SC+r}")
        for j in range(3):
            A(f"v_cvt_pk_bf16_f32 v{PF+j}, v{SC+2*j}, v{SC+2*j+1}")
        if tl + 2 < 4:
            A(f"ds_read_b128 {vr(KF, 4)}, v{AC0} offset:{(tl + 2) * 2048}")
            A(f"ds_read_b128 {vr(KF+4, 4)}, v{AC1} offset:{(tl + 2) * 2048}")
        else:
            A(f"ds_read_b128 {vr(KF, 4)}, v{AN0} offset:{(tl - 2) * 2048}")
            A(f"ds_read_b128 {vr(KF+4, 4)}, v{AN1} offset:{(tl - 2) * 2048}")
        for r in range(12, 16):
            if 'NOEXP' not in FL:
                A(f"v_exp_f32 v{SC+r}, v{SC+r}")
        for j in range(3, 8):
            A(f"v_cvt_pk_bf16_f32 v{PF+j}, v{SC+2*j}, v{SC+2*j+1}")
        A("s_nop 0")
    A("s_mov_b32 s43, s44")
    A("s_mov_b32 s44, s45")
    A("s_mov_b32 s45, s46")
    A("s_mov_b32 s46, s43")
    A(f"v_mov_b32 v{AC0}, v{AN0}")
    A(f"v_mov_b32 v{AC1}, v{AN1}")
    A(f"v_add_u32 v{AN0}, s45, v{B0}")
    A(f"v_add_u32 v{AN1}, s45, v{B1}")
    A("s_add_u32 s40, s40, 1")
    A("s_cmp_lt_u32 s40, 16")
    A("s_cbranch_scc1 AT_loop")
    A.inloop = False
    A("s_waitcnt lgkmcnt(0)")
    A(f"v_mfma_f32_32x32x16_bf16 {vr(O, 16)}, {vr(VF, 4)}, {vr(PF, 4)}, {vr(O, 16)}")
    A(f"v_mfma_f32_32x32x16_bf16 {vr(O, 16)}, {vr(VF+4, 4)}, {vr(PF+4, 4)}, {vr(O, 16)}")
    A("s_nop 15")
    A("s_nop 3")
    A(f"v_mov_b32 v{T+2}, v{O+8}")
    A(f"v_mov_b32 v{T+3}, v{O+8}")
    A("s_nop 1")
    A(f"v_permlane32_swap_b32 v{T+2}, v{T+3}")
    A("s_nop 1")
    A(f"v_cndmask_b32 v{T+2}, v{O+8}, v{T+3}, s[48:49]")
    A(f"v_rcp_f32 v{T+2}, v{T+2}")
    A("s_nop 0")
    for r in range(12):
        A(f"v_mul_f32 v{O+r}, v{O+r}, v{T+2}")
    A(f"v_and_b32 v{T+3}, 31, v{LN_}")
    A(f"v_add_u32 v{T+3}, s36, v{T+3}")
    A(f"v_mul_u32_u24 v{T+3}, 1280, v{T+3}")
    A("s_mul_i32 s37, s34, 40")
    A(f"v_lshrrev_b32 v{T+4}, 5, v{LN_}")
    A(f"v_lshlrev_b32 v{T+4}, 3, v{T+4}")
    A(f"v_add3_u32 v{T+3}, v{T+3}, v{T+4}, s37")
    for g in range(3):
        A(f"v_cvt_pk_bf16_f32 v{T+4}, v{O+4*g}, v{O+4*g+1}")
        A(f"v_cvt_pk_bf16_f32 v{T+5}, v{O+4*g+2}, v{O+4*g+3}")
        if g == 2:
            A("s_mov_b64 exec, s[48:49]")
        A(f"buffer_store_dwordx2 {vr(T+4, 2)}, v{T+3}, s[20:23], 0 offen offset:{16 * g}")
    A("s_branch AT_done")
    A.label("AT_gemm")
    G = Gemm(1, 2, 4, 2)
    T = G.T
    A("s_load_dwordx2 s[4:5], s[0:1], 48")
    A("s_load_dwordx2 s[6:7], s[0:1], 72")
    A("s_sub_u32 s2, s2, 256")
    A("s_and_b32 s34, s2, 15")
    A("s_lshr_b32 s35, s2, 4")
    A("s_mul_i32 s58, s35, 52")
    A("s_lshr_b32 s58, s58, 8")
    A("s_mul_i32 s33, s58, 5")
    A("s_sub_u32 s35, s35, s33")
    G.setup(A)
    A("s_lshl_b32 s36, s34, 7")
    A("s_lshl_b32 s37, s35, 8")
    A("s_waitcnt lgkmcnt(0)")
    A(f"s_add_u32 s16, s6, {WS_H}")
    A("s_addc_u32 s17, s7, 0")
    A(f"s_mul_i32 s33, s58, {18 * 64}")
    A("s_add_u32 s16, s16, s33")
    A("s_addc_u32 s17, s17, 0")
    A(f"s_mul_i32 s33, s58, {18 * 32 * 1280}")
    A("s_add_u32 s4, s4, s33")
    A("s_addc_u32 s5, s5, 0")
    A("s_mov_b32 s40, 64")
    A("s_mov_b32 s41, 0")
    A(f"s_mov_b32 s42, {32 * 1280}")
    A("s_mov_b32 s43, 0")
    G.xaddr(A, 16, DF * 2, 36)
    G.waddr_plain(A, 4, 1280, 37)
    G.fin_setup(A)
    G.mainloop(A, 18, True)
    IS = 528
    A(f"v_and_b32 v{T+2}, 31, v{T}")
    A("s_lshl_b32 s39, s31, 5")
    A(f"v_add_u32 v{T+2}, s39, v{T+2}")
    A(f"v_mul_u32_u24 v{T+2}, {IS}, v{T+2}")
    A("s_lshl_b32 s39, s32, 8")
    A(f"v_lshrrev_b32 v{T+3}, 5, v{T}")
    A(f"v_lshlrev_b32 v{T+3}, 4, v{T+3}")
    A(f"v_add3_u32 v{T+2}, v{T+2}, v{T+3}, s39")
    for ci in range(2):
        for q4 in range(4):
            A(f"ds_write_b128 v{T+2}, {vr(G.acc(0, ci) + 4 * q4, 4)} offset:{ci * 128 + q4 * 32}")
    A(f"s_add_u32 s44, s6, {WS_P}")
    A("s_addc_u32 s45, s7, 0")
    A(f"s_mul_i32 s33, s58, {S * D * 4}")
    A("s_add_u32 s44, s44, s33")
    A("s_addc_u32 s45, s45, 0")
    A(f"s_mov_b32 s46, {S * D * 4}")
    A("s_mov_b32 s47, 0x00020000")
    A(f"v_lshrrev_b32 v{T+2}, 5, v{G.TID}")
    A(f"v_and_b32 v{T+3}, 31, v{G.TID}")
    A(f"v_lshlrev_b32 v{T+3}, 4, v{T+3}")
    A(f"v_mul_u32_u24 v{T+4}, {IS}, v{T+2}")
    A(f"v_add_u32 v{T+4}, v{T+4}, v{T+3}")
    A(f"v_add_u32 v{T+2}, s36, v{T+2}")
    A(f"v_mul_u32_u24 v{T+2}, 2560, v{T+2}")
    A("s_lshl_b32 s37, s37, 1")
    A(f"v_add3_u32 v{T+2}, v{T+2}, v{T+3}, s37")
    A("s_waitcnt lgkmcnt(0)")
    A("s_barrier")
    for i in range(8):
        A(f"ds_read_b128 {vr(4 * i, 4)}, v{T+4} offset:{i * 16 * IS}")
    for i in range(8):
        A(f"s_mov_b32 s39, {i * 16 * 2560}")
        A(f"s_waitcnt lgkmcnt({7 - i})")
        A(f"buffer_store_dwordx4 {vr(4 * i, 4)}, v{T+2}, s[44:47], s39 offen")
    A.label("AT_done")
    A("s_endpgm")
    return kernel_desc(name, max(104, G.NV))


def main():
    A = Asm()
    hdr = open("parallel_sum__mha_block__glu_gated_geglu__prompt.s.ref").read().split("; Override")[0]
    descs = [gen_ln(A)]
    d1, lds1, n1 = gen_gemm1(A)
    descs.append(d1)
    descs.append(gen_attn(A))
    d2, lds2, n2 = gen_gemm2(A, 1, int(os.environ.get('K3TN', '2')))
    descs.append(d2)
    out = hdr
    out += "; @launch kernel=ln_kernel grid=(512,1,1) block=(256,1,1) lds=0\n"
    out += f"; @launch kernel=gemm1_kernel grid=({n1},1,1) block=(768,1,1) lds={lds1}\n"
    out += f"; @launch kernel=attn_kernel grid=({256 + NGW},1,1) block=(512,1,1) lds={LDS_ATT}\n"
    out += f"; @launch kernel=gemm2_kernel grid=({n2},1,1) block=(256,1,1) lds={lds2}\n"
    out += '.amdgcn_target "amdgcn-amd-amdhsa--gfx950"\n.text\n'
    out += "\n".join(A.lines) + "\n"
    out += "".join(descs)
    dst = sys.argv[1] if len(sys.argv) > 1 else "parallel_sum__mha_block__glu_gated_geglu__prompt.s"
    open(dst, "w").write(out)


if __name__ == "__main__":
    main()
```
